```python
import torch

def _softmax(x, axis=-1):
    return torch.softmax(x, dim=axis)
def _gelu(x):
    return torch.nn.functional.gelu(x, approximate="tanh")
def _silu(x):
    return torch.nn.functional.silu(x)
def _sigmoid(x):
    return torch.sigmoid(x)
def _layernorm(x, axis=-1, eps=1e-5):
    m = x.mean(dim=axis, keepdim=True)
    v = x.var(dim=axis, keepdim=True, unbiased=False)
    return (x - m) / torch.sqrt(v + eps)
def _scatter_add(tgt, idx, src, axis=0):
    return tgt.clone().index_add_(axis, idx, src)
def _segment_sum(src, seg, n):
    out = torch.zeros((n,) + src.shape[1:], dtype=src.dtype)
    return out.index_add_(0, seg, src)
def _pad(x, pw):
    flat = tuple(v for pair in reversed(pw) for v in pair)
    return torch.nn.functional.pad(x, flat)

kernel_name = 'parallel_sum__linear_attn_block__mixer_channel_mlp__prompt'

def setup_inputs():

    _w = (lambda a: (lambda t: t.to(torch.bfloat16) if t.is_floating_point() else t)(torch.as_tensor(a)))
    def _A_setup():
        B, S, D = 1, 2048, 448
        return {
            "x": _w((lambda *s: torch.randn(*s, dtype=torch.bfloat16) * 0.05)(B, S, D)),
            "wqkv": _w((lambda *s: torch.randn(*s, dtype=torch.bfloat16) * 0.1)(D, 3 * D)),
            "wo": _w((lambda *s: torch.randn(*s, dtype=torch.bfloat16) * 0.05)(D, D)),
        }
    _A_in = _A_setup()

    def _B_setup():
        B, S, D, F = 1, 2048, 448, 1792
        return {
            "x": _w((lambda *s: torch.randn(*s, dtype=torch.bfloat16) * 0.05)(B, S, D)),
            "w1": _w((lambda *s: torch.randn(*s, dtype=torch.bfloat16) * 1.6)(D, F) * (D ** -0.5)),
            "b1": _w((lambda *s: torch.randn(*s, dtype=torch.bfloat16) * 0.4)(F)),
            "w2": _w((lambda *s: torch.randn(*s, dtype=torch.bfloat16) * 0.05)(F, D) * (F ** -0.5)),
            "b2": _w((lambda *s: torch.randn(*s, dtype=torch.bfloat16) * 0.05)(D)),
        }
    _B_in = _B_setup()

    return {
        "A_x": _A_in["x"],
        "A_wqkv": _A_in["wqkv"],
        "A_wo": _A_in["wo"],
        "B_x": _B_in["x"],
        "B_w1": _B_in["w1"],
        "B_b1": _B_in["b1"],
        "B_w2": _B_in["w2"],
        "B_b2": _B_in["b2"],
    }

def reference(A_x, A_wqkv, A_wo, B_x, B_w1, B_b1, B_w2, B_b2):
    def _A_ref(x, wqkv, wo):
        B, S, D = x.shape
        H = 16; Dh = D // H
        qkv = (lambda x, *d: x.permute(*d))((x @ wqkv).reshape(B, S, 3, H, Dh), 2, 0, 3, 1, 4)
        q, k, v = qkv[0], qkv[1], qkv[2]
        phi = lambda t: torch.where(t > 0, t + 1, torch.exp(t)) + 1e-6
        pq, pk = phi(q), phi(k)
        kv = torch.einsum("bhsd,bhse->bhde", pk, v)
        z = torch.einsum("bhsd->bhd", pk)
        num = torch.einsum("bhqd,bhde->bhqe", pq, kv)
        den = torch.einsum("bhqd,bhd->bhq", pq, z)[..., None] + 1e-6
        o = num / den
        return (lambda x, *d: x.permute(*d))(o, 0, 2, 1, 3).reshape(B, S, D) @ wo

    def _B_ref(x, w1, b1, w2, b2):
        y = _layernorm(x, axis=-1)
        h = _gelu(torch.einsum("bsd,df->bsf", y, w1) + b1)
        return torch.einsum("bsf,fd->bsd", h, w2) + b2

    x = A_x
    xn = _layernorm(x, axis=-1)
    return x + _A_ref(xn, A_wqkv, A_wo) + _B_ref(xn, B_w1, B_b1, B_w2, B_b2)
```

```python
import re

TRANS = ("v_exp_f32", "v_log_f32", "v_rcp_f32", "v_rsq_f32", "v_sqrt_f32", "v_sin_f32", "v_cos_f32", "v_rcp_iflag_f32")
CF = ("s_branch", "s_cbranch", "s_call_b64", "s_setpc_b64", "s_swappc_b64", "s_endpgm")

def regs_of(tok):
    tok = tok.strip()
    tok = re.sub(r"^-|^abs\(|\)$|^\|", "", tok).strip("|")
    m = re.fullmatch(r"([vsa])(\d+)", tok)
    if m: return {(m.group(1), int(m.group(2)))}
    m = re.fullmatch(r"([vsa])\[(\d+):(\d+)\]", tok)
    if m: return {(m.group(1), i) for i in range(int(m.group(2)), int(m.group(3)) + 1)}
    if tok in ("vcc", "vcc_lo", "vcc_hi"): return {("s", "vcc")}
    if tok in ("exec", "exec_lo", "exec_hi"): return {("s", "exec")}
    if tok == "m0": return {("s", "m0")}
    return set()

class Ins:
    __slots__ = ("text", "op", "ops", "mods", "wr", "rd", "kind", "passes", "src", "states")
    def __init__(self, text):
        self.text = text
        t = text.split(";")[0].strip()
        parts = t.split(None, 1)
        self.op = op = parts[0]
        rest = parts[1] if len(parts) > 1 else ""
        ops, depth, cur = [], 0, ""
        for chh in rest:
            if chh in "[(": depth += 1
            if chh in "])": depth -= 1
            if chh == "," and depth == 0: ops.append(cur.strip()); cur = ""
            else: cur += chh
        if cur.strip(): ops.append(cur.strip())
        mods = ""
        if ops:
            sp = ops[-1].split(None, 1)
            ops[-1] = sp[0]
            mods = sp[1] if len(sp) > 1 else ""
        self.ops, self.mods = ops, mods
        R = [regs_of(o) for o in ops]
        U = lambda l: set().union(*l) if l else set()
        self.passes = 0; self.src = None
        self.states = 1
        if op == "s_nop": self.states = int(ops[0], 0) + 1
        if op.startswith("v_mfma"):
            self.kind = "mfma"; self.wr = R[0]; self.rd = U(R[1:]); self.src = R
            self.passes = 8 if "32x32x16" in op else 4 if "16x16x32" in op else 16
        elif op.startswith("v_"):
            self.kind = "valu"
            if op.startswith("v_cmp"):
                self.wr = R[0]; self.rd = U(R[1:])
                assert not op.startswith("v_cmpx")
            elif op.startswith("v_permlane") and "swap" in op:
                self.wr = U(R); self.rd = U(R)
            elif op.startswith(("v_add_co", "v_sub_co", "v_addc_co", "v_subb_co", "v_div_scale", "v_mad_u64")):
                self.wr = R[0] | R[1]; self.rd = U(R[2:])
            elif op == "v_nop":
                self.wr = set(); self.rd = set()
            else:
                self.wr = R[0]; self.rd = U(R[1:])
                if op.startswith(("v_fmac", "v_dot2c", "v_mac")) or "dpp" in op or "row_" in mods or "quad_perm" in mods:
                    self.rd = self.rd | R[0]
            self.src = R
        elif op.startswith(("buffer_", "global_", "flat_", "scratch_")):
            self.kind = "vmem"
            islds = " lds" in (" " + mods) or "load_lds" in op
            if "load" in op and not islds:
                self.wr = R[0]; self.rd = U(R[1:])
            elif "atomic" in op and " sc0" in (" " + mods):
                if op.startswith("buffer"): self.wr = R[0]; self.rd = U(R)
                else: self.wr = R[0]; self.rd = U(R[1:])
            else:
                self.wr = set(); self.rd = U(R)
            if islds: self.rd = self.rd | {("s", "m0")}
            self.src = R
        elif op.startswith("ds_"):
            self.kind = "ds"
            if op.startswith(("ds_read", "ds_bpermute", "ds_permute", "ds_swizzle")) or "_rtn" in op:
                self.wr = R[0]; self.rd = U(R[1:])
            else:
                self.wr = set(); self.rd = U(R)
        else:
            self.kind = "salu"
            if op.startswith(("s_cmp", "s_waitcnt", "s_barrier", "s_nop", "s_branch", "s_cbranch", "s_setprio", "s_sleep", "s_endpgm", "s_setpc", "s_bitcmp")):
                self.wr = set(); self.rd = U(R)
            else:
                self.wr = R[0] if R else set(); self.rd = U(R[1:])
                if "saveexec" in op: self.wr = self.wr | {("s", "exec")}

    def is_dpp(self): return "dpp" in self.op or "row_" in self.mods or "quad_perm" in self.mods
    def store_data(self):
        if self.kind == "vmem" and ("store" in self.op) and ("x3" in self.op or "x4" in self.op):
            return self.src[0] if self.op.startswith("buffer") else self.src[1]
        return set()

def need(p, c):
    n = 0
    V = lambda s: {r for r in s if r[0] in "va"}
    S = lambda s: {r for r in s if r[0] == "s"}
    if c is None:
        if p.kind == "mfma": return {4: 8, 8: 12, 16: 20}[p.passes]
        if p.kind == "valu":
            if S(p.wr): return 5
            if p.op.startswith("v_dot"): return 3
            if V(p.wr): return 2
        if p.kind == "salu" and ("s", "m0") in p.wr: return 1
        if p.store_data(): return 2
        return 0
    if p.kind == "mfma":
        big = {4: 8, 8: 12, 16: 20}[p.passes]
        if c.kind == "mfma":
            if (c.src[1] | c.src[2]) & p.wr: n = max(n, big)
            if c.src[3] & p.wr:
                if not (c.src[3] == p.wr and c.passes == p.passes): n = max(n, big - 2)
            elif c.wr & p.wr and not (c.wr == p.wr and c.passes == p.passes): n = max(n, big)
        elif c.kind in ("valu", "vmem", "ds"):
            if (c.rd | c.wr) & p.wr: n = max(n, big)
            if c.kind == "valu" and c.wr & p.src[3]: n = max(n, {4: 3, 8: 7, 16: 15}[p.passes])
    elif p.kind == "valu":
        vw, sw = V(p.wr), S(p.wr)
        if c.kind == "mfma" and c.rd & vw: n = max(n, 2)
        if p.op.startswith("v_dot"):
            if (c.rd | c.wr) & vw:
                same = c.op == p.op
                if same:
                    ab = c.src[1] | c.src[2]
                    if ab & vw: n = max(n, 3)
                else: n = max(n, 3)
        if p.op.startswith(TRANS) and c.rd & vw and not c.op.startswith(TRANS): n = max(n, 1)
        if c.kind == "valu":
            if c.rd & vw:
                if c.is_dpp() or c.op.startswith("v_permlane"): n = max(n, 2)
                if c.op.startswith(("v_readlane", "v_readfirstlane")): n = max(n, 1)
            rs = set(c.rd)
            if c.op.startswith("v_cndmask") and len(c.ops) == 3: rs = rs | {("s", "vcc")}
            if rs & sw: n = max(n, 4 if c.op.startswith(("v_readlane", "v_writelane")) else 2)
        if c.kind == "vmem" and c.rd & sw: n = max(n, 5)
        if c.kind == "salu" and c.rd & sw: n = max(n, 2)
        if c.kind == "salu" and c.op.startswith("s_cbranch_vcc") and ("s", "vcc") in sw: n = max(n, 5)
    elif p.kind == "salu":
        if ("s", "m0") in p.wr and ("s", "m0") in c.rd and c.kind == "vmem": n = max(n, 1)
    elif p.kind == "vmem":
        sd = p.store_data()
        if sd & c.wr: n = max(n, 2 if c.kind in ("valu", "mfma") else 1)
    return n

class Asm:
    def __init__(self):
        self.items = []
        self.hist = []
        self.nops = 0
    def raw(self, text): self.items.append(text)
    def label(self, name):
        self.items.append(f"{name}:")
    def comment(self, text): self.items.append(f"    ; {text}")
    def __call__(self, text):
        for line in text.strip().split("\n"):
            line = line.strip()
            if not line or line.startswith(";"):
                continue
            if line.endswith(":"):
                self.label(line[:-1]); continue
            self.emit(Ins(line))
    def emit(self, ins):
        cf = ins.op.startswith(CF)
        dist, pad = 0, 0
        for p in reversed(self.hist):
            n = need(p, ins)
            if cf and ins.op != "s_endpgm": n = max(n, need(p, None) - 1)
            if n - dist > pad: pad = n - dist
            dist += p.states
            if dist > 24: break
        while pad > 0:
            k = min(pad, 16)
            nop = Ins(f"s_nop {k-1}")
            self.items.append("    " + nop.text); self.hist.append(nop); self.nops += 1
            pad -= k
        self.items.append("    " + ins.text)
        self.hist.append(ins)
        if len(self.hist) > 64: self.hist = self.hist[-40:]
    def text(self): return "\n".join(self.items) + "\n"

def vr(b, n=1): return f"v{b}" if n == 1 else f"v[{b}:{b+n-1}]"
def sr(b, n=1): return f"s{b}" if n == 1 else f"s[{b}:{b+n-1}]"
import struct
def f32(x): return "0x%08x" % struct.unpack("<I", struct.pack("<f", x))[0]
```

```python
import sys, math
from asmlib import *

NAME = "parallel_sum__linear_attn_block__mixer_channel_mlp__prompt"
HDR = open("cdna_kernels/%s.s.ref" % NAME).read().split("; Override launch geometry")[0]
PROF = "--prof" in sys.argv
FINE = "--fine" in sys.argv
PF = "--nopf" not in sys.argv
CPF = "--nocpf" not in sys.argv
L2W = "--nol2w" not in sys.argv
L2V = "--nol2v" not in sys.argv
L2H = "--nol2h" not in sys.argv

WS_KV = 0xA00000
WS_CNT = 0xA10000
WS_CNT2 = 0xA20000
WS_SIZE = 0xA30000
WS_PROF = 0xB00000
if PROF: WS_SIZE = 0xD00000
UNIT = 28672
U = [0, UNIT, 2 * UNIT, 3 * UNIT, 4 * UNIT]
RING = [U[2], U[3], U[4], U[0], U[1]]
XB = 3 * UNIT
MISC = XB + 65536
BI = MISC
LCNT = 163840 - 64
SCR = [U[1], 5 * UNIT]
LDS = 163840
OOB_M0 = 0x38000
LOG2E = 1.4426950408889634
K0 = -2.0 * math.sqrt(2.0 / math.pi) * LOG2E
K1 = K0 * 0.044715
SPIN = 200000
M1, M2, MF_, MO = 1, 1 << 6, 1 << 12, 1 << 18
NKS = 144
W2U = 224 * 896

pX, pWQKV, pWO, pW1, pB1, pW2, pB2, pOUT, pDBG, pWS = 16, 18, 20, 24, 26, 28, 30, 32, 34, 36
SX, SW, SH, SD, SW2, SWO, SDM = 40, 44, 48, 52, 56, 60, 64
(sW, sRG, sG, sTYPE, sSTR, sT, sT2, sCH, sTT, sMASKHI, sONES, sK1, sHOFF, sTGB, sCHh, sKQ, sHEAD, sSPIN,
 sDO, sDSTEP, sTT2, sKH, sP2, sCT, sRT, sWL, sCB) = range(68, 95)
sRET = 96; sSEL = 98
sU = [4, 5, 6, 7, 8, 9, 10]
sMS = 11; sKC = 12; sPW = 13; sPUB = 14; sROT = 15; sHB = 95; sX0 = 100; sX1 = 101
sHK = 22
vHK = 123; vPF = 124
vL, vT0, vT1, vT2, vT3 = 1, 2, 3, 4, 5
vOX, vOW, vOW2, vXW, vAL, vA0, vA1, vL16, vK0, vBIA = 6, 7, 8, 9, 10, 11, 12, 13, 14, 15
vXR = [16, 17, 18, 19]
vMLO, vMV, vOV, vZ = 20, 21, 22, 23
ST = 24; PQ = 24
ACC = 32; BR = 48; AF = 64; TMP = 80; PK = 96; UR = 104
XR = 64
vFL = 120; vOWP1 = 121; vDM = 122
XF = 128
ACC2 = 24
AFR = [128, 56]
HBQ = [[184 + 4*s for s in range(7)], [212 + 4*s for s in range(7)], [112, 116, 120, 124, 240, 244, 248]]
vB0, vB1, vBL0, vL16b, vXO, vOWP, vPL, vPK = 11, 12, 10, 9, 7, 6, 16, 17

def stamp(a, i, fine=False):
    if PROF and (FINE or not fine): a(f"s_memtime s[38:39]\ns_waitcnt lgkmcnt(0)\nv_writelane_b32 v254, s38, {i}")
def stamp_rt(a, i):
    if PROF: a(f"s_memrealtime s[38:39]\ns_waitcnt lgkmcnt(0)\nv_writelane_b32 v254, s38, {i}")
def srd(a, b, plo, size):
    a(f"s_mov_b64 s[{b}:{b+1}], s[{plo}:{plo+1}]\ns_mov_b32 s{b+2}, {size}\ns_mov_b32 s{b+3}, 0x20000")

class Cnt:
    def __init__(self, a, name, mx): self.a, self.name, self.mx, self.q = a, name, mx, []
    def add(self, tag, n=1): self.q += [tag] * n
    def wait(self, tag):
        idx = [i for i, t in enumerate(self.q) if t == tag]
        if not idx: return
        n = len(self.q) - 1 - idx[-1]
        self.a(f"s_waitcnt {self.name}({min(n, self.mx)})")
        self.q = self.q[idx[-1] + 1:]

def gen(a):
    name = NAME + "_kernel"
    a.raw(f".globl {name}\n.p2align 8\n.type {name},@function\n{name}:")
    MF = "v_mfma_f32_32x32x16_bf16"
    uid = [0]
    def L(p): uid[0] += 1; return f"L_{p}{uid[0]}"
    a("s_cmp_ge_u32 s2, 256\ns_cbranch_scc1 L_EXIT")
    if PROF: a("v_mov_b32 v254, 0")
    stamp(a, 0); stamp_rt(a, 62)
    a("s_load_dwordx16 s[16:31], s[0:1], 0\ns_load_dwordx4 s[32:35], s[0:1], 64\ns_load_dwordx2 s[36:37], s[0:1], 80")
    sWR = sHOFF
    a(f"""
    v_lshrrev_b32 v{vT0}, 6, v0
    v_and_b32 v{vL}, 63, v0
    v_readfirstlane_b32 s{sW}, v{vT0}
    s_and_b32 s{sT}, s2, 7
    s_lshr_b32 s{sT2}, s2, 3
    s_lshr_b32 s{sROT}, s{sT2}, 3
    s_lshr_b32 s{sRG}, s{sT}, 1
    s_lshl_b32 s{sRG}, s{sRG}, 2
    s_add_u32 s{sRG}, s{sRG}, s{sROT}
    s_lshl_b32 s{sRT}, s{sT}, 2
    s_add_u32 s{sRT}, s{sRT}, s{sROT}
    s_and_b32 s{sT2}, s{sT2}, 7
    s_lshr_b32 s{sTYPE}, s{sT2}, 2
    s_and_b32 s{sG}, s{sT}, 1
    s_lshl_b32 s{sG}, s{sG}, 2
    s_and_b32 s3, s{sT2}, 3
    s_add_u32 s{sG}, s{sG}, s3
    s_cmp_lg_u32 s{sT2}, 1
    s_cselect_b32 s{sP2}, 1, 0
    s_cmp_gt_u32 s{sT2}, 1
    s_cselect_b32 s3, 1, 0
    s_sub_u32 s{sCT}, s{sT2}, s3
    s_add_u32 s{sWR}, s{sW}, s{sT2}
    s_and_b32 s{sWR}, s{sWR}, 7
    s_lshr_b32 s{sCH}, s{sW}, 2
    s_and_b32 s{sTT}, s{sW}, 3
    v_lshrrev_b32 v{vT0}, 3, v{vL}
    v_and_b32 v{vT1}, 7, v{vL}
    v_mul_u32_u24 v{vOX}, 896, v{vT0}
    v_lshl_add_u32 v{vOX}, v{vT1}, 4, v{vOX}
    s_lshl_b32 s{sX0}, s{sRG}, 3
    s_add_u32 s{sX0}, s{sX0}, s{sWR}
    s_mul_i32 s{sX0}, s{sX0}, {16*896}
    s_add_u32 s{sX1}, s{sX0}, {8*896}
    v_lshlrev_b32 v{vL16}, 4, v{vL}
    v_mov_b32 v{vZ}, 0
    s_lshl_b32 s{sHEAD}, s{sG}, 1
    s_add_u32 s{sHEAD}, s{sHEAD}, s{sCH}
    s_mov_b32 s{SX+2}, {2048*896}
    s_mov_b32 s{SX+3}, 0x20000
    s_mov_b32 s{SH+2}, {WS_SIZE}
    s_mov_b32 s{SH+3}, 0x20000
    s_mov_b32 s{SDM+3}, 0x20000
    v_lshlrev_b32 v{vT2}, 7, v{vL}
    """)
    for i in range(4): a(f"v_mov_b32 v{ST+i}, 0")
    a(f"""
    s_waitcnt lgkmcnt(0)
    s_mov_b64 s[{SX}:{SX+1}], s[{pX}:{pX+1}]
    s_mov_b64 s[{SH}:{SH+1}], s[{pWS}:{pWS+1}]
    """)
    def xloads():
        for kb in range(7):
            for o in range(2):
                a(f"buffer_load_dwordx4 {vr(XR + (kb*2+o)*4, 4)}, v{vOX}, {sr(SX,4)}, s{sX0+o} offen offset:{kb*128}")
    def latepf():
        if not PF: return
        a(f"""
        s_cmp_lt_u32 s{sW}, 6
        s_cselect_b64 s[{SDM}:{SDM+1}], s[{pW1}:{pW1+1}], s[{pWQKV}:{pWQKV+1}]
        s_cselect_b32 s{sT}, 25, 19
        s_mov_b32 s{SDM+2}, {448*2688}
        s_cselect_b32 s{SDM+2}, {448*3584}, s{SDM+2}
        s_and_b32 s3, s{sW}, 1
        s_lshl_b32 s{sSPIN}, s2, 1
        s_add_u32 s3, s3, s{sSPIN}
        s_mul_i32 s3, s3, s{sT}
        s_lshl_b32 s3, s3, 7
        v_lshlrev_b32 v{vDM}, 7, v{vL}
        s_bfm_b64 exec, s{sT}, 0
        buffer_load_dword v{vPF}, v{vDM}, {sr(SDM,4)}, s3 offen
        s_mov_b64 exec, -1
        """)
    a(f"s_cmp_eq_u32 s{sCH}, 0\ns_cbranch_scc0 L_X1")
    xloads()
    a("s_branch L_X2\nL_X1:")
    if PF:
        a(f"""
        s_cmp_gt_u32 s{sW}, 5
        s_cbranch_scc1 L_NPF
        s_cmp_eq_u32 s{sW}, 4
        s_cbranch_scc0 L_PFK
        s_mul_i32 s3, s2, 14
        v_add_u32 v{vT2}, s3, v{vL}
        v_lshrrev_b32 v{vT3}, 3, v{vT2}
        v_mul_u32_u24 v{vT3}, 3584, v{vT3}
        v_and_b32 v{vT2}, 7, v{vT2}
        v_lshl_add_u32 v{vT2}, v{vT2}, 7, v{vT3}
        s_mov_b64 exec, 0x3fff
        global_load_dword v{vFL}, v{vT2}, s[{pW1}:{pW1+1}]
        s_mov_b64 exec, -1
        s_branch L_NPF
L_PFK:
        s_mul_i32 s3, s2, 14
        v_add_u32 v{vT2}, s3, v{vL}
        v_lshrrev_b32 v{vT3}, 3, v{vT2}
        v_mul_u32_u24 v{vT3}, 2688, v{vT3}
        v_and_b32 v{vT2}, 7, v{vT2}
        v_lshl_add_u32 v{vT2}, v{vT2}, 7, v{vT3}
        s_mov_b64 exec, 0x3fff
        global_load_dword v{vFL}, v{vT2}, s[{pWQKV}:{pWQKV+1}] offset:896
        s_mov_b64 exec, -1
L_NPF:
        """)
    if CPF:
        a(f"""
        s_cmp_lg_u32 s{sW}, 6
        s_cbranch_scc1 L_NCP
        s_getpc_b64 s[{sRET}:{sRET+1}]
        s_lshr_b32 s3, s2, 3
        s_mul_i32 s3, s3, {5*128}
        v_add_u32 v{vT2}, s3, v{vT2}
        s_mov_b64 exec, 0x1f
        global_load_dword v{vFL}, v{vT2}, s[{sRET}:{sRET+1}]
        s_mov_b64 exec, -1
L_NCP:
        """)
    a(f"""
    s_cmp_eq_u32 s{sTYPE}, 0
    s_cbranch_scc0 L_ZM
    s_cmp_lg_u32 s{sRG}, 0
    s_cbranch_scc1 L_X2
    s_lshl_b32 s3, s{sG}, 13
    s_lshl_b32 s{sT}, s{sTT}, 11
    s_add_u32 s3, s3, s{sT}
    s_add_u32 s3, s3, {WS_KV}
    buffer_store_dwordx4 {vr(ST,4)}, v{vL16}, {sr(SH,4)}, s3 offen sc1
    buffer_store_dwordx4 {vr(ST,4)}, v{vL16}, {sr(SH,4)}, s3 offen offset:1024 sc1
    s_lshl_b32 s3, s{sG}, 9
    s_add_u32 s3, s3, {WS_CNT}
    buffer_store_dword v{ST}, v{vZ}, {sr(SH,4)}, s3 offen sc1
    buffer_store_dword v{ST}, v{vZ}, {sr(SH,4)}, s3 offen offset:256 sc1
    s_branch L_X2
L_ZM:
    s_mov_b64 s[{SDM}:{SDM+1}], s[{pB1}:{pB1+1}]
    s_mov_b32 s{SDM+2}, {1792*2}
    s_lshl_b32 s3, s{sTT}, 10
    buffer_load_dwordx4 {vr(BR,4)}, v{vL16}, {sr(SDM,4)}, s3 offen
    s_or_b32 s3, s{sG}, s{sTT}
    s_cmp_lg_u32 s3, 0
    s_cbranch_scc1 L_X2
    s_lshl_b32 s3, s{sRG}, 10
    s_add_u32 s3, s3, {WS_CNT2}
    buffer_store_dwordx4 {vr(ST,4)}, v{vL16}, {sr(SH,4)}, s3 offen sc1
L_X2:
    """)
    srd(a, SD, pDBG, 256); srd(a, SW2, pW2, 1792 * 896); srd(a, SWO, pWO, 448 * 896)
    a(f"""
    s_add_u32 s{sWL}, s{sTT}, s{sROT}
    s_and_b32 s{sWL}, s{sWL}, 3
    s_cmp_eq_u32 s{sTYPE}, 0
    s_cselect_b64 s[{SW}:{SW+1}], s[{pWQKV}:{pWQKV+1}], s[{pW1}:{pW1+1}]
    s_mov_b32 s{SW+3}, 0x20000
    s_mov_b32 s{sSTR}, 3584
    s_cselect_b32 s{sSTR}, 2688, s{sSTR}
    s_mul_i32 s{SW+2}, s{sSTR}, 448
    s_cselect_b64 s[{sSEL}:{sSEL+1}], 0, -1
    s_mul_i32 s{sT}, s{sWL}, s{sSTR}
    s_cbranch_scc0 L_PM
    s_lshl_b32 s{sT}, s{sT}, 3
    s_mul_i32 s3, s{sG}, 112
    s_add_u32 s{sT}, s{sT}, s3
    s_add_u32 s{sU[0]}, s{sT}, 896
    s_add_u32 s{sU[1]}, s{sT}, {896 + 224*2688}
    s_add_u32 s{sU[2]}, s{sT}, 1792
    s_add_u32 s{sU[3]}, s{sT}, {1792 + 224*2688}
    s_mov_b32 s{sU[4]}, s{sT}
    s_add_u32 s{sU[5]}, s{sT}, {224*2688}
    s_mul_i32 s{sT2}, s{sCH}, 56
    s_branch L_PJ
L_PM:
    s_lshl_b32 s{sT}, s{sT}, 3
    s_lshl_b32 s{sCHh}, s{sG}, 6
    s_add_u32 s{sCHh}, s{sCHh}, 3072
    s_lshl_b32 s3, s{sG}, 7
    s_add_u32 s{sU[0]}, s{sT}, s3
    s_add_u32 s{sU[1]}, s{sU[0]}, {224*3584}
    s_add_u32 s{sU[2]}, s{sU[0]}, 1024
    s_add_u32 s{sU[3]}, s{sU[0]}, {1024 + 224*3584}
    s_add_u32 s{sU[4]}, s{sU[0]}, 2048
    s_add_u32 s{sU[5]}, s{sU[0]}, {2048 + 224*3584}
    s_add_u32 s{sU[6]}, s{sT}, s{sCHh}
    s_lshl_b32 s{sT2}, s{sCH}, 6
    s_add_u32 s{sCB}, s{sT2}, s3
L_PJ:
    s_lshl_b32 s{sDSTEP}, s{sSTR}, 5
    v_lshrrev_b32 v{vT2}, 2, v{vL}
    v_and_b32 v{vT2}, 4, v{vT2}
    v_xor_b32 v{vT2}, v{vT2}, v{vT1}
    v_mul_lo_u32 v{vT3}, v{vT0}, s{sSTR}
    v_lshl_add_u32 v{vOW}, v{vT2}, 4, v{vT3}
    v_mul_u32_u24 v{vOWP1}, 896, v{vT0}
    v_lshl_add_u32 v{vOWP1}, v{vT2}, 4, v{vOWP1}
    s_lshl_b32 s3, s{sCT}, 7
    s_mul_i32 s{sT}, s{sWL}, {8*896}
    s_add_u32 s3, s3, s{sT}
    v_add_u32 v{vOWP1}, s3, v{vOWP1}
    v_and_b32 v{vOW2}, 3, v{vT2}
    v_lshl_add_u32 v{vOW2}, v{vOW2}, 4, v{vT3}
    v_lshrrev_b32 v{vT2}, 2, v{vT2}
    s_mov_b32 s3, {224*3584}
    v_mul_lo_u32 v{vT2}, v{vT2}, s3
    v_add_u32 v{vOW2}, v{vOW2}, v{vT2}
    v_xor_b32 v{vT2}, v{vT0}, v{vT1}
    v_lshlrev_b32 v{vT2}, 4, v{vT2}
    v_lshl_add_u32 v{vXW}, v{vT1}, 9, v{vT2}
    s_lshr_b32 s3, s{sWR}, 1
    s_lshl_b32 s3, s3, 14
    s_and_b32 s{sT}, s{sWR}, 1
    s_lshl_b32 s{sT}, s{sT}, 8
    s_add_u32 s3, s3, s{sT}
    s_add_u32 s3, s3, {XB}
    v_add_u32 v{vXW}, s3, v{vXW}
    v_lshrrev_b32 v{vT2}, 5, v{vL}
    v_and_b32 v{vT3}, 31, v{vL}
    v_xor_b32 v{vT3}, v{vT3}, v{vT2}
    v_lshlrev_b32 v{vT3}, 4, v{vT3}
    v_lshl_add_u32 v{vT3}, v{vT2}, 9, v{vT3}
    s_lshl_b32 s3, s{sTT}, 14
    s_add_u32 s3, s3, {XB}
    """)
    for j in range(4):
        a(f"v_xor_b32 v{vXR[j]}, {32*j}, v{vT3}\nv_add_u32 v{vXR[j]}, s3, v{vXR[j]}")
    a(f"""
    v_and_b32 v{vT0}, 3, v{vL}
    v_lshlrev_b32 v{vT0}, 3, v{vT0}
    v_and_b32 v{vT1}, 16, v{vL}
    v_lshl_add_u32 v{vT0}, v{vT1}, 1, v{vT0}
    v_add_u32 v{vT0}, s{sT2}, v{vT0}
    v_and_b32 v{vT1}, 8, v{vL}
    v_lshlrev_b32 v{vT1}, 3, v{vT1}
    v_xor_b32 v{vT0}, v{vT0}, v{vT1}
    v_and_b32 v{vT1}, 12, v{vL}
    v_lshl_add_u32 v{vT0}, v{vT1}, 5, v{vT0}
    v_lshl_add_u32 v{vAL}, v{vT2}, 10, v{vT0}
    s_mov_b32 s{sMASKHI}, 0xffff0000
    s_mov_b32 s{sONES}, 0x3f803f80
    s_mov_b32 s{sK1}, {f32(K1)}
    v_mov_b32 v{vK0}, {f32(K0)}
    v_lshlrev_b32 v{vBIA}, 4, v{vT2}
    v_add_u32 v{vBIA}, {BI}, v{vBIA}
    s_lshl_b32 s{sTGB}, s{sRG}, 2
    s_add_u32 s{sTGB}, s{sTGB}, s{sTT}
    s_lshl_b32 s{sMS}, s{sTGB}, 8
    s_add_u32 s{sMS}, s{sMS}, {WS_CNT2}
    s_mul_i32 s{sTGB}, s{sTGB}, {NKS*1024}
    s_lshl_b32 s{sWL}, s{sWL}, 10
    s_mov_b32 m0, s{sWL}
    s_and_b32 s{sTT2}, s{sW}, 1
    s_lshr_b32 s{sKQ}, s{sW}, 1
    s_add_u32 s{sKQ}, s{sKQ}, s{sCT}
    s_and_b32 s{sKQ}, s{sKQ}, 3
    s_lshr_b32 s{sKH}, s{sKQ}, 1
    s_lshl_b32 s{sHB}, s{sRT}, 1
    s_add_u32 s{sHB}, s{sHB}, s{sTT2}
    s_lshl_b32 s{sPW}, s{sHB}, 8
    s_add_u32 s{sPW}, s{sPW}, {WS_CNT2}
    s_mul_i32 s{sHB}, s{sHB}, {NKS}
    s_mul_i32 s3, s{sKQ}, 7
    s_add_u32 s{sHB}, s{sHB}, s3
    s_lshl_b32 s{sHB}, s{sHB}, 10
    s_lshl_b32 s{sKC}, s{sHEAD}, 8
    s_add_u32 s{sKC}, s{sKC}, {WS_CNT}
    v_add_u32 v{vA0}, {U[0]}, v{vAL}
    v_add_u32 v{vA1}, {U[1]}, v{vAL}
    """)
    a(f"s_cmp_eq_u32 s{sCH}, 0\ns_cbranch_scc1 L_X3")
    xloads()
    a("s_setprio 1\nL_X3:")
    stamp(a, 1)
    for kb in range(7):
        a(f"s_waitcnt vmcnt({12 - 2*kb})")
        for d in range(4):
            for o in range(2):
                r = XR + (kb*2+o)*4 + d
                a(f"v_dot2c_f32_bf16 v{ST+o}, s{sONES}, v{r}\nv_dot2c_f32_bf16 v{ST+2+o}, v{r}, v{r}")
    stamp(a, 2)
    a(f"v_mov_b32 v{vOWP}, v{vOWP1}")
    for pat in ("quad_perm:[1,0,3,2]", "quad_perm:[2,3,0,1]", "row_half_mirror"):
        for i in range(4):
            a(f"v_add_f32_dpp v{ST+i}, v{ST+i}, v{ST+i} {pat} row_mask:0xf bank_mask:0xf")
    inv = f32(1.0 / 448.0); eps = f32(1e-5)
    for o in range(2): a(f"v_mul_f32 v{ST+o}, {inv}, v{ST+o}")
    for o in range(2): a(f"v_mul_f32 v{ST+2+o}, {inv}, v{ST+2+o}")
    for o in range(2): a(f"v_fma_f32 v{ST+2+o}, -v{ST+o}, v{ST+o}, v{ST+2+o}")
    for o in range(2): a(f"v_max_f32 v{ST+2+o}, 0, v{ST+2+o}")
    for o in range(2): a(f"v_add_f32 v{ST+4+o}, {eps}, v{ST+2+o}")
    for o in range(2): a(f"v_rsq_f32 v{ST+4+o}, v{ST+4+o}")
    for o in range(2): a(f"v_mul_f32 v{ST+2+o}, v{ST+2+o}, v{ST+4+o}")
    for o in range(2): a(f"v_mul_f32 v{ST+2+o}, v{ST+2+o}, v{ST+4+o}")
    for o in range(2): a(f"v_add_f32 v{ST+2+o}, {eps}, v{ST+2+o}")
    for o in range(2): a(f"v_rsq_f32 v{ST+2+o}, v{ST+2+o}")
    for o in range(2): a(f"v_cndmask_b32 v{ST+2+o}, 1.0, v{ST+2+o}, s[{sSEL}:{sSEL+1}]")
    a(f"v_mul_f32 v{ST+6}, v{ST+5}, v{ST+3}\nv_mul_f32 v{ST+4}, v{ST+4}, v{ST+2}")
    a(f"v_mul_f32 v{ST+5}, -v{ST}, v{ST+4}\nv_mul_f32 v{ST+7}, -v{ST+1}, v{ST+6}")
    NT = ACC
    def xw(kb, o, lk=None):
        a(f"ds_write_b128 v{vXW}, {vr(XR + (kb*2+o)*4, 4)} offset:{(kb%4)*4096 + o*128}")
        if lk: lk.add("w")
    def norm(kb):
        for o in range(2):
            t = NT + 8 * o
            r = XR + (kb*2+o)*4
            P = vr(ST+4+2*o, 2)
            for d in range(4): a(f"v_lshlrev_b32 v{t+2*d}, 16, v{r+d}\nv_and_b32 v{t+2*d+1}, s{sMASKHI}, v{r+d}")
            for d in range(4): a(f"v_pk_fma_f32 {vr(t+2*d,2)}, {vr(t+2*d,2)}, {P}, {P} op_sel:[0,0,1] op_sel_hi:[1,0,1]")
            for d in range(4): a(f"v_cvt_pk_bf16_f32 v{r+d}, v{t+2*d}, v{t+2*d+1}")
            if kb < 4: xw(kb, o)
    def xr(s, lk=None):
        a(f"ds_read_b128 {vr(XF + 4*s, 4)}, v{vXR[s%4]} offset:{(s%16)*1024}")
        if lk: lk.add(("x", s))
    def dmas(n, S, vo, src, step, lstep=4096):
        for i in range(n):
            a(f"buffer_load_dwordx4 v{vo}, {sr(S,4)}, s{src} offen lds\ns_add_u32 s{src}, s{src}, {step}\ns_add_u32 m0, m0, {lstep}")
    def burst(S, vo, slot, src, step):
        a(f"s_add_u32 m0, s{sWL}, {slot}"); dmas(7, S, vo, src, step)
    def only_ch(ch, f):
        l = L("C"); a(f"s_cmp_eq_u32 s{sCH}, {ch}\ns_cbranch_scc0 {l}"); f(); a(f"{l}:")
    ST_ = f"s{sDSTEP}"
    norm(0); norm(1); norm(2)
    only_ch(0, lambda: dmas(3, SW, vOW, sU[0], ST_))
    norm(3); norm(4)
    only_ch(0, lambda: dmas(4, SW, vOW, sU[0], ST_))
    norm(5); norm(6)
    def b_misc():
        lb = L("NB")
        a(f"s_cmp_eq_u32 s{sTYPE}, 0\ns_cbranch_scc1 {lb}")
        for d in range(4): a(f"v_lshlrev_b32 v{NT+2*d}, 16, v{BR+d}\nv_and_b32 v{NT+2*d+1}, s{sMASKHI}, v{BR+d}")
        a(f"s_lshl_b32 s3, s{sTT}, 11\ns_add_u32 s3, s3, {BI}\nv_lshlrev_b32 v{vT0}, 5, v{vL}\nv_add_u32 v{vT0}, s3, v{vT0}")
        a(f"ds_write_b128 v{vT0}, {vr(NT,4)}\nds_write_b128 v{vT0}, {vr(NT+4,4)} offset:16\n{lb}:")
        a("s_setprio 0")
        latepf()
    la, lj = L("I"), L("J")
    a(f"s_cmp_eq_u32 s{sCH}, 0\ns_cbranch_scc1 {la}"); b_misc(); a(f"s_branch {lj}\n{la}:")
    burst(SW, vOW, U[1], sU[1], ST_)
    a(f"{lj}:")
    stamp(a, 3)

    def setA(lo, hi, xor=False):
        a(f"v_add_u32 v{vA0}, {lo}, v{vAL}")
        if xor: a(f"v_xor_b32 v{vA1}, 64, v{vA0}")
        else: a(f"v_add_u32 v{vA1}, {hi}, v{vAL}")
    sc = [4]
    def call(l):
        a(f"s_call_b64 s[{sRET}:{sRET+1}], {l}")
        stamp(a, sc[0], True); sc[0] += 1
    def bar(fine=False):
        a("s_barrier"); stamp(a, sc[0], fine); sc[0] += 1
    def bias(cb_sgpr, add, lk=None):
        a(f"s_lshl_b32 s3, s{cb_sgpr}, 1\nv_add_u32 v{vT0}, s3, v{vBIA}")
        for i in range(4): a(f"ds_read_b128 {vr(BR+4*i,4)}, v{vT0} offset:{2*add + 32*i}")
        if lk: lk.add("b", 4)
    def hoff(cb_sgpr, add):
        a(f"s_lshl_b32 s3, s{cb_sgpr}, 5\ns_add_u32 s3, s3, {32*add}\ns_add_u32 s{sHOFF}, s3, s{sTGB}")
    def trd(s, lk=None):
        va = vA0 if s < 14 else vA1
        b = AF + 4 * (s % 4)
        a(f"ds_read_b64_tr_b16 {vr(b,2)}, v{va} offset:{(s%14)*2048}\nds_read_b64_tr_b16 {vr(b+2,2)}, v{va} offset:{(s%14)*2048+512}")
        if lk: lk.add(("t", s), 2)
    def mf(s, orient, czero=False):
        A, B = vr(AF + 4*(s%4), 4), vr(XF + 4*s, 4)
        if orient == "N": A, B = B, A
        C = ("0" if czero else vr(BR, 16)) if s == 0 else vr(ACC, 16)
        a(f"{MF} {vr(UR if s == 27 else ACC,16)}, {A}, {B}, {C}")
    def setD(S, vo, step, slotA, srcA, slotB, srcB, vo2=None):
        a(f"s_mov_b64 s[{SDM}:{SDM+1}], s[{S}:{S+1}]\ns_mov_b32 s{SDM+2}, s{S+2}\ns_mov_b32 s{sDSTEP}, {step}")
        a(f"s_mov_b32 s3, {slotB}\ns_mov_b32 s{sDO}, {srcB}\ns_cmp_eq_u32 s{sCH}, 0\ns_cselect_b32 s3, {slotA}, s3\ns_cselect_b32 s{sDO}, {srcA}, s{sDO}")
        if vo2 is None: a(f"v_mov_b32 v{vDM}, v{vo}")
        else: a(f"s_cselect_b64 vcc, -1, 0\nv_cndmask_b32 v{vDM}, v{vo2}, v{vo}, vcc")
        a(f"s_add_u32 m0, s{sWL}, s3")
    DLD = f"buffer_load_dwordx4 v{vDM}, {sr(SDM,4)}, s{sDO} offen lds"
    DUP = f"s_add_u32 m0, m0, 4096\ns_add_u32 s{sDO}, s{sDO}, s{sDSTEP}"
    def flags_load():
        a(f"v_lshlrev_b32 v{vT1}, 2, v{vL}\nbuffer_load_dword v{vFL}, v{vT1}, {sr(SD,4)}, 0 offen sc1")
    def flags_check():
        lc, ld = L("FC"), L("FD")
        a(f"""
        s_mov_b32 s{sSPIN}, 0
{lc}:
        v_cmp_ne_u32 vcc, 0, v{vFL}
        s_and_b32 s3, vcc_lo, 0xffff00ff
        s_cmp_eq_u32 s3, 0xffff00ff
        s_cbranch_scc1 {ld}
        s_add_u32 s{sSPIN}, s{sSPIN}, 1
        s_cmp_gt_u32 s{sSPIN}, {SPIN}
        s_cbranch_scc1 {ld}
        """)
        flags_load()
        a(f"s_waitcnt vmcnt(0)\ns_branch {lc}\n{ld}:")
    def atom_add(soff, val):
        a(f"v_mov_b32 v{vT2}, {val}\ns_mov_b64 exec, 1\nbuffer_atomic_add v{vT2}, v{vZ}, {sr(SH,4)}, s{soff} offen\ns_mov_b64 exec, -1")
    def poll_issue(vreg, soff):
        a(f"buffer_load_dword v{vreg}, v{vZ}, {sr(SH,4)}, s{soff} offen sc1")
    def poll_check(vreg, soff, mask, target):
        lc, ld = L("PC"), L("PD")
        a(f"""
        s_mov_b32 s{sSPIN}, 0
{lc}:
        v_readfirstlane_b32 s3, v{vreg}
        s_and_b32 s3, s3, {mask}
        s_cmp_eq_u32 s3, {target}
        s_cbranch_scc1 {ld}
        s_add_u32 s{sSPIN}, s{sSPIN}, 1
        s_cmp_gt_u32 s{sSPIN}, {SPIN}
        s_cbranch_scc1 {ld}
        s_sleep 1
        """)
        poll_issue(vreg, soff)
        a(f"s_waitcnt vmcnt(0)\ns_branch {lc}\n{ld}:")
    def zflag_pub(cond_a, cond_b, idx, off):
        l = L("ZF")
        a(f"s_xor_b32 s3, s{sW}, 4\ns_or_b32 s3, s3, s{cond_a}\ns_cmp_lg_u32 s3, 0\ns_cbranch_scc1 {l}\nv_mov_b32 v{vT2}, 1\ns_lshl_b32 s3, s{idx}, 2")
        a(f"buffer_store_dword v{vT2}, v{vZ}, {sr(SD,4)}, s3 offen offset:{off} sc1\n{l}:")
    def midx(dst):
        a(f"s_lshl_b32 s{dst}, s{sROT}, 2\ns_and_b32 s3, s{sG}, 3\ns_add_u32 s{dst}, s{dst}, s3\ns_lshl_b32 s{dst}, s{dst}, 3\ns_add_u32 s{dst}, s{dst}, s{sW}")
    def pf_lin(S, n, base):
        midx(sT)
        a(f"s_mul_i32 s{sT}, s{sT}, {n*128}\ns_add_u32 s{sT}, s{sT}, {base}\nv_lshlrev_b32 v{vT1}, 7, v{vL}\ns_bfm_b64 exec, {n}, 0")
        a(f"buffer_load_dword v{vPF}, v{vT1}, {sr(S,4)}, s{sT} offen\ns_mov_b64 exec, -1")
    def pf_vq():
        midx(sT)
        a(f"""
        s_mul_i32 s{sT}, s{sT}, 28
        v_add_u32 v{vT1}, s{sT}, v{vL}
        v_lshrrev_b32 v{vT2}, 3, v{vT1}
        v_mul_u32_u24 v{vT2}, 2688, v{vT2}
        v_and_b32 v{vT3}, 3, v{vT1}
        v_lshl_add_u32 v{vT2}, v{vT3}, 7, v{vT2}
        v_bfe_u32 v{vT3}, v{vT1}, 2, 1
        v_mul_u32_u24 v{vT3}, 1792, v{vT3}
        v_add_u32 v{vT2}, v{vT2}, v{vT3}
        s_lshr_b32 s3, s{sG}, 2
        s_mul_i32 s3, s3, 384
        v_add_u32 v{vT2}, s3, v{vT2}
        s_bfm_b64 exec, 28, 0
        global_load_dword v{vPF}, v{vT2}, s[{pWQKV}:{pWQKV+1}]
        s_mov_b64 exec, -1
        """)
    def gemm_first(orient):
        T = orient == "T"
        lk = Cnt(a, "lgkmcnt", 15)
        if T: bias(sCB, 0, lk)
        xr(0, lk); trd(0, lk); xr(1, lk); trd(1, lk); xr(2, lk); trd(2, lk); xr(3, lk)
        a(f"s_mul_i32 s3, s{sCH}, s{sDSTEP}\ns_lshl_b32 s3, s3, 2\ns_add_u32 s{sU[2]}, s{sU[2]}, s3\ns_lshl_b32 s3, s{sCH}, 14\ns_add_u32 s3, s3, {U[2]}\ns_add_u32 m0, s{sWL}, s3")
        if T: zflag_pub(sG, 0, sRG, 64)
        else: zflag_pub(sRG, 0, sG, 0)
        for s in range(28):
            if s == 5:
                lk.wait(("x", 15)); bar(True)
                for kb in range(4, 7):
                    for o in range(2): xw(kb, o, lk)
            if s == 11:
                lk.wait("w"); a("s_waitcnt vmcnt(4)"); bar(True)
                for x in range(16, 22): xr(x, lk)
                if T and L2V: pf_vq()
            if s == 13:
                for x in range(22, 28): xr(x, lk)
            if s == 18:
                lk.wait(("x", 27)); bar(True)
                if T: setD(SW, vOW, 32 * 3584, U[3], f"s{sU[3]}", U[4], f"s{sU[4]}")
                else:
                    a(f"s_mul_i32 s3, s{sCH}, {4*32*2688}\ns_add_u32 s{sU[3]}, s{sU[3]}, s3\ns_lshl_b32 s3, s{sCH}, 14\ns_add_u32 s3, s3, {U[3]}\ns_add_u32 m0, s{sWL}, s3")
            if s + 3 < 28: trd(s + 3, lk)
            if s < 4:
                for x in range(4 + 3*s, 7 + 3*s): xr(x, lk)
            lk.wait(("t", s)); lk.wait(("x", s))
            mf(s, orient, czero=not T)
            if s in (1, 3, 6): dmas(1, SW, vOW, sU[2], ST_)
            if s == 8: only_ch(0, lambda: dmas(1, SW, vOW, sU[2], ST_))
            if s >= 19:
                if T and s < 26: a(DLD + "\n" + DUP)
                if not T and s in (19, 21, 23): dmas(1, SW, vOW, sU[3], 32 * 2688)
                if not T and s == 25: only_ch(0, lambda: dmas(1, SW, vOW, sU[3], 32 * 2688))
        stamp(a, sc[0], True); sc[0] += 1

    a("s_waitcnt vmcnt(7) lgkmcnt(0)"); bar()
    a(f"s_cmp_eq_u32 s{sTYPE}, 0\ns_cbranch_scc1 L_ATT")
    gemm_first("T")
    flags_load()
    bias(sCB, 1024); setA(U[2], U[3]); hoff(sCB, 0)
    setD(SW, vOW, 32 * 3584, U[0], f"s{sU[5]}", U[1], f"s{sU[6]}", vo2=vOW2)
    a(f"s_mov_b64 s[{sHK}:{sHK+1}], 0\nv_mov_b32 v{vHK}, {M1}")
    la, lj = L("I"), L("J")
    a(f"s_cmp_eq_u32 s{sCH}, 0\ns_cbranch_scc1 {la}\ns_waitcnt vmcnt(8)\ns_branch {lj}\n{la}:\ns_waitcnt vmcnt(1)\n{lj}:")
    bar()
    if L2W: pf_lin(SW2, 49, 0)
    call("GE")
    bias(sCB, 2048); setA(U[4], U[0]); hoff(sCB, 1024)
    setD(SW2, vOWP, 32 * 896, RING[0], 0, RING[1], W2U)
    a(f"s_mov_b64 s[{sHK}:{sHK+1}], 1\ns_waitcnt vmcnt(2)")
    flags_check()
    bar()
    if L2W: pf_lin(SW2, 49, 4 * W2U); pf_lin(SWO, 25, 0)
    call("GE")
    hoff(sCB, 2048)
    setD(SW2, vOWP, 32 * 896, RING[2], 2 * W2U, RING[3], 3 * W2U)
    a(f"v_mov_b32 v{vHK}, {M2}\ns_cmp_eq_u32 s{sCH}, 0\ns_cbranch_scc0 L_MB")
    bias(sCHh, 0); setA(U[1], 0, xor=True)
    a("s_waitcnt vmcnt(2)"); bar()
    call("GE")
    hoff(sCHh, 0)
    a(f"s_mov_b32 s{sPUB}, 1\ns_branch L_P2")
    a("L_MB:"); sc[0] -= 2
    a("s_waitcnt vmcnt(2)"); bar()
    for i in range(7): a(DLD + "\n" + DUP)
    call("EPI_GELU")
    a("s_waitcnt vmcnt(9)"); atom_add(sMS, M2)
    a(f"s_mov_b32 s{sPUB}, 0\ns_branch L_P2")

    a("L_ATT:"); sc[0] = 5
    gemm_first("N")
    a(f"""
    v_and_b32 v{vT0}, 31, v{vL}
    v_cmp_gt_u32 s[{sDO}:{sDO+1}], 28, v{vT0}
    v_cmp_eq_u32 vcc, 28, v{vT0}
    v_mov_b32 v{vT1}, s{sONES}
    v_cndmask_b32 v{vMV}, 0, -1, s[{sDO}:{sDO+1}]
    v_cndmask_b32 v{vOV}, 0, v{vT1}, vcc
    v_cmp_gt_u32 vcc, 32, v{vL}
    v_cndmask_b32 v{vMLO}, 0, -1, vcc
    """)
    flags_load()
    call("PHI")
    for p in range(8): a(f"v_mov_b32 v{PK+p}, v{TMP+p}")
    setA(U[2], U[3])
    setD(SW, vOW, 32 * 2688, U[0], f"s{sU[5]}", U[4], f"s{sU[4]}")
    a("s_waitcnt vmcnt(0)"); bar()
    call("GN")
    VV = TMP
    for p in range(8): a(f"v_cvt_pk_bf16_f32 v{VV+p}, v{UR+2*p}, v{UR+2*p+1}")
    for p in range(8): a(f"v_and_or_b32 v{VV+p}, v{VV+p}, v{vMV}, v{vOV}")
    a(f"{MF} {vr(ACC,16)}, {vr(PK,4)}, {vr(VV,4)}, 0\n{MF} {vr(ACC,16)}, {vr(PK+4,4)}, {vr(VV+4,4)}, {vr(ACC,16)}")
    a(f"""
    s_mul_i32 s{sT}, s{sCH}, {SCR[1] - SCR[0]}
    s_add_u32 s{sT}, s{sT}, {SCR[0]}
    s_lshl_b32 s3, s{sTT}, 10
    s_add_u32 s3, s3, s{sT}
    v_add_u32 v{vT1}, s3, v{vL16}
    s_lshl_b32 s3, s{sTT}, 12
    s_add_u32 s3, s3, s{sT}
    v_add_u32 v{vT3}, s3, v{vL16}
    """)
    for q in range(4): a(f"ds_write_b128 v{vT1}, {vr(ACC+4*q,4)} offset:{4096*q}")
    flags_check()
    a("s_waitcnt lgkmcnt(0)"); bar()
    for k in range(4): a(f"ds_read_b128 {vr(TMP+4*k,4)}, v{vT3} offset:{1024*k}")
    a(f"""
    s_lshl_b32 s3, s{sHEAD}, 12
    s_lshl_b32 s{sT}, s{sTT}, 10
    s_add_u32 s{sT}, s3, s{sT}
    s_add_u32 s{sT}, s{sT}, {WS_KV}
    v_lshlrev_b32 v{vT0}, 2, v{vL}
    """)
    setA(U[4], U[0])
    setD(SW2, vOWP, 32 * 896, RING[0], 0, RING[1], W2U)
    a(f"s_cmp_eq_u32 s{sP2}, 0\ns_cselect_b32 s{SDM+2}, 0, s{SDM+2}")
    a("s_waitcnt lgkmcnt(0)")
    for j in range(4): a(f"v_add_f32 v{TMP+j}, v{TMP+j}, v{TMP+4+j}\nv_add_f32 v{TMP+8+j}, v{TMP+8+j}, v{TMP+12+j}")
    for j in range(4): a(f"v_add_f32 v{TMP+j}, v{TMP+j}, v{TMP+8+j}")
    for j in range(4): a(f"buffer_atomic_add_f32 v{TMP+j}, v{vT0}, {sr(SH,4)}, s{sT} offen offset:{256*j}")
    a("s_waitcnt vmcnt(4)"); bar()
    call("GQ")
    a("s_waitcnt vmcnt(0)"); bar()
    lx = L("KS")
    a(f"s_cmp_lg_u32 s{sTT}, 0\ns_cbranch_scc1 {lx}"); atom_add(sKC, 1); a(f"{lx}:")
    lx = L("NI")
    a(f"s_cmp_eq_u32 s{sP2}, 0\ns_cbranch_scc1 {lx}")
    setD(SW2, vOWP, 32 * 896, RING[2], 2 * W2U, RING[3], 3 * W2U)
    for i in range(7): a(DLD + "\n" + DUP)
    a(f"{lx}:")
    call("PHI")
    for p in range(8): a(f"v_mov_b32 v{PQ+p}, v{TMP+p}")
    for p in (6, 7): a(f"v_and_b32 v{PQ+p}, v{vMLO}, v{PQ+p}")
    a(f"s_mov_b32 s{sPUB}, 2\ns_waitcnt vmcnt(0)\ns_cmp_eq_u32 s{sP2}, 0\ns_cbranch_scc0 L_P2")
    poll_issue(vPK, sKC); a("s_waitcnt vmcnt(0)")
    a(f"s_call_b64 s[{sRET}:{sRET+1}], OST_LOAD\ns_waitcnt vmcnt(0)\ns_call_b64 s[{sRET}:{sRET+1}], OST_COMP\ns_waitcnt vmcnt(0)")
    atom_add(sMS, MO)
    a("s_branch L_END")
    KVR = 212; KP = 228; OACC = 40; OP = 32
    def ost_load():
        poll_check(vPK, sKC, -1, 16)
        a(f"s_lshl_b32 s3, s{sHEAD}, 12\ns_add_u32 s3, s3, {WS_KV}\nv_lshlrev_b32 v{vT0}, 2, v{vL}")
        for r in range(16): a(f"buffer_load_dword v{KVR+r}, v{vT0}, {sr(SH,4)}, s3 offen offset:{256*r} sc1")
    def ost_comp():
        a(f"s_lshl_b32 s3, s{sHEAD}, 11\ns_add_u32 s3, s3, {112*1024}\ns_add_u32 s{sHOFF}, s{sTGB}, s3")
        for p in range(8): a(f"v_cvt_pk_bf16_f32 v{KP+p}, v{KVR+2*p}, v{KVR+2*p+1}")
        for p in (6, 7): a(f"v_and_b32 v{KP+p}, v{vMLO}, v{KP+p}")
        a(f"{MF} {vr(OACC,16)}, {vr(KP,4)}, {vr(PQ,4)}, 0\n{MF} {vr(OACC,16)}, {vr(KP+4,4)}, {vr(PQ+4,4)}, {vr(OACC,16)}")
        a(f"v_mov_b32 v{vT1}, v{OACC+12}\nv_mov_b32 v{vT2}, v{OACC+12}\nv_permlane32_swap_b32 v{vT1}, v{vT2}")
        a(f"v_add_f32 v{vT2}, {f32(1e-6)}, v{vT2}\nv_rcp_f32 v{vT2}, v{vT2}")
        for i in range(16): a(f"v_mul_f32 v{OACC+i}, v{OACC+i}, v{vT2}")
        for p in range(8): a(f"v_cvt_pk_bf16_f32 v{OP+p}, v{OACC+2*p}, v{OACC+2*p+1}")
        for p in (6, 7): a(f"v_and_b32 v{OP+p}, v{vMLO}, v{OP+p}")
        a(f"buffer_store_dwordx4 {vr(OP,4)}, v{vL16}, {sr(SH,4)}, s{sHOFF} offen sc1")
        a(f"buffer_store_dwordx4 {vr(OP+4,4)}, v{vL16}, {sr(SH,4)}, s{sHOFF} offen offset:1024 sc1")

    a("L_P2:")
    stamp(a, 30)
    a(f"""
    v_and_b32 v{vT0}, 3, v{vL}
    v_lshlrev_b32 v{vT0}, 3, v{vT0}
    v_and_b32 v{vT1}, 16, v{vL}
    v_lshl_add_u32 v{vT0}, v{vT1}, 1, v{vT0}
    v_and_b32 v{vT1}, 8, v{vL}
    v_lshl_add_u32 v{vT0}, v{vT1}, 3, v{vT0}
    v_and_b32 v{vT1}, 12, v{vL}
    v_lshl_add_u32 v{vT0}, v{vT1}, 5, v{vT0}
    v_lshrrev_b32 v{vT2}, 5, v{vL}
    v_lshl_add_u32 v{vT0}, v{vT2}, 9, v{vT0}
    s_and_b32 s3, s{sKQ}, 1
    s_mul_i32 s3, s3, {112*128}
    v_add_u32 v{vBL0}, s3, v{vT0}
    v_add_u32 v{vL16b}, 4096, v{vL16}
    """)
    def setB(i):
        a(f"s_mov_b32 s3, {RING[(2*i+1)%5]}\ns_cmp_eq_u32 s{sKH}, 0\ns_cselect_b32 s3, {RING[(2*i)%5]}, s3\nv_add_u32 v{vB0}, s3, v{vBL0}\nv_xor_b32 v{vB1}, 64, v{vB0}")
    XA = [HBQ[2][0], HBQ[2][1]]; XH = HBQ[2][2]
    def afr(i, s, c): return XA[c] if s == 7 else AFR[i % 2] + (s*2 + c) * 4
    def hbq(i, s): return XH if s == 7 else HBQ[i % 3][s]
    def tr2(i, s):
        off = s * 2048 if i < 4 else (28 * (s // 2) + 16 * (s % 2)) * 128
        for c in range(2):
            b = afr(i, s, c)
            v2 = vT2 + c if s == 7 else vB0 + c
            a(f"ds_read_b64_tr_b16 {vr(b,2)}, v{vB0+c} offset:{off}\nds_read_b64_tr_b16 {vr(b+2,2)}, v{v2} offset:{off+1024}")
    def TR(i):
        setB(i)
        for s in range(7):
            if s >= 3: a("s_waitcnt lgkmcnt(8)")
            tr2(i, s)
    vm = Cnt(a, "vmcnt", 63)
    sHI = sX1
    def hset(i):
        a(f"s_add_u32 s{sHI}, s{sHB}, {i*28*1024}")
        if i == 4: a(f"s_lshl_b32 s3, s{sKQ}, 10\ns_add_u32 s{sHI}, s{sHI}, s3")
    def hld(i, s):
        vo = vL16 if s < 4 else vL16b
        a(f"buffer_load_dwordx4 {vr(hbq(i, s), 4)}, v{vo}, {sr(SH,4)}, s{sHI} offen offset:{(s%4)*1024} sc1")
        vm.add(("H", i, s))
    def only(val, f):
        l = L("O"); a(f"s_cmp_eq_u32 s{sPUB}, {val}\ns_cbranch_scc0 {l}"); f(); a(f"{l}:")
    def notonly(val, f):
        l = L("O"); a(f"s_cmp_eq_u32 s{sPUB}, {val}\ns_cbranch_scc1 {l}"); f(); a(f"{l}:")
    def d7(tag):
        for i in range(7): a(DLD + "\n" + DUP)
        vm.add(tag, 7)
    def P(): poll_issue(vPL, sPW); vm.add("P")
    F = lambda m: (m * 63, m * 16)
    TR(0)
    a("s_waitcnt vmcnt(2) lgkmcnt(0)\ns_barrier")
    stamp(a, 31)
    only_ch(1, lambda: (a(f"s_mov_b32 s{sDO}, {4*W2U}"), burst(SW2, vOWP, RING[4], sDO, 32 * 896)))
    only(1, lambda: a(f"s_call_b64 s[{sRET}:{sRET+1}], EPI_GELU"))
    setD(SW2, vOWP, 32 * 896, RING[1], 6 * W2U, RING[0], 5 * W2U)
    d7("D5")
    only(2, lambda: poll_issue(vPK, sKC))
    P()
    TR(1)
    a(f"""
    s_cmp_eq_u32 s{sCH}, 0
    s_cselect_b32 s{sDO}, {7*W2U}, 0
    s_mov_b32 s3, {RING[3]}
    s_cselect_b32 s3, {RING[2]}, s3
    s_cselect_b64 s[{SDM}:{SDM+1}], s[{SW2}:{SW2+1}], s[{SWO}:{SWO+1}]
    s_cselect_b32 s{SDM+2}, s{SW2+2}, s{SWO+2}
    s_add_u32 m0, s{sWL}, s3
    s_waitcnt lgkmcnt(0)
    s_barrier
    """)
    stamp(a, 32)
    d7("D7")
    stamp(a, 20, True)
    vm.wait("P")
    stamp(a, 21, True)
    notonly(2, lambda: atom_add(sMS, MF_))
    only(2, lambda: a(f"s_call_b64 s[{sRET}:{sRET+1}], OST_LOAD"))
    stamp(a, 22, True)
    poll_check(vPL, sPW, *F(M1))
    stamp(a, 23, True)
    P()
    hset(0)
    for s in range(7): hld(0, s)
    stamp(a, 24, True)
    a("s_barrier")
    stamp(a, 33)
    vm.wait("P")
    stamp(a, 25, True)
    only(2, lambda: a(f"s_call_b64 s[{sRET}:{sRET+1}], OST_COMP"))
    poll_check(vPL, sPW, *F(M1 + M2))
    stamp(a, 26, True)
    P()
    hset(1)
    for s in range(7): hld(1, s)
    stamp(a, 27, True)
    vm.wait("P")
    stamp(a, 28, True)
    only(2, lambda: atom_add(sMS, MO))
    poll_check(vPL, sPW, *F(MF_))
    stamp(a, 34)
    RES = AFR[1]
    for i in range(5):
        if i + 2 <= 4: setB(i + 2); hset(i + 2)
        ns = 8 if i == 4 else 7
        for s in range(ns):
            vm.wait(("H", i, s))
            for c in range(2):
                C = "0" if (i == 0 and s == 0) else vr(ACC2 + 16*c, 16)
                a(f"{MF} {vr(ACC2+16*c,16)}, {vr(afr(i, s, c),4)}, {vr(hbq(i, s),4)}, {C}")
            if i + 2 <= 4:
                hld(i + 2, s)
                if s >= 1:
                    if s >= 4: a("s_waitcnt lgkmcnt(8)")
                    tr2(i + 2, s - 1)
        stamp(a, 35 + 2*i)
        if i + 2 <= 4:
            a("s_waitcnt lgkmcnt(8)"); tr2(i + 2, 6)
        if i == 0:
            a("s_waitcnt lgkmcnt(0)\ns_barrier")
            stamp(a, 36)
            only_ch(0, lambda: (a(f"s_mov_b32 s{sDO}, {W2U}"), burst(SWO, vOWP, RING[4], sDO, 32 * 896)))
            P()
        elif i == 1:
            vm.wait("P")
            a("s_waitcnt lgkmcnt(0)\ns_barrier")
            stamp(a, 38)
            poll_check(vPL, sPW, *F(MO))
        elif i == 2:
            hld(4, 7)
            a(f"v_lshrrev_b32 v{vT0}, 5, v{vL}\nv_lshlrev_b32 v{vT0}, 9, v{vT0}\nv_sub_u32 v{vT2}, v{vB0}, v{vT0}\nv_sub_u32 v{vT3}, v{vB1}, v{vT0}")
            a("s_waitcnt lgkmcnt(8)"); tr2(4, 7)
            a("s_waitcnt lgkmcnt(0)")
        elif i == 3:
            srd(a, SDM, pB2, 896)
            a(f"""
            v_and_b32 v{vT0}, 31, v{vL}
            v_lshrrev_b32 v{vT2}, 5, v{vL}
            v_mul_u32_u24 v{vXO}, 896, v{vT0}
            v_lshl_add_u32 v{vXO}, v{vT2}, 4, v{vXO}
            s_lshl_b32 s3, s{sRT}, 1
            s_add_u32 s3, s3, s{sTT2}
            s_mul_i32 s3, s3, {32*896}
            s_lshl_b32 s{sT}, s{sCT}, 7
            s_lshl_b32 s{sT2}, s{sKQ}, 5
            s_add_u32 s{sT}, s{sT}, s{sT2}
            s_add_u32 s3, s3, s{sT}
            v_add_u32 v{vXO}, s3, v{vXO}
            v_lshlrev_b32 v{vT1}, 4, v{vT2}
            buffer_load_dwordx4 {vr(RES,4)}, v{vXO}, {sr(SX,4)}, 0 offen
            buffer_load_dwordx4 {vr(RES+4,4)}, v{vT1}, {sr(SDM,4)}, s{sT} offen
            """)
            vm.add("R", 2)
            a(f"""
            s_mul_i32 s3, s{sTT2}, {RING[1] - RING[0]}
            s_add_u32 s3, s3, {RING[0]}
            v_add_u32 v{vT0}, s3, v{vL16}
            s_mul_i32 s{sT}, s{sKQ}, 6144
            v_add_u32 v{vT1}, s{sT}, v{vT0}
            """)
    stamp(a, 50)
    R = AFR[1] + 8
    labs = [L("Q") for _ in range(4)]
    a(f"s_cmp_eq_u32 s{sKQ}, 1\ns_cbranch_scc1 {labs[1]}\ns_cmp_eq_u32 s{sKQ}, 2\ns_cbranch_scc1 {labs[2]}\ns_cmp_eq_u32 s{sKQ}, 3\ns_cbranch_scc1 {labs[3]}")
    for kq in range(4):
        a(f"{labs[kq]}:")
        for q in range(4):
            if q == kq: continue
            sl = (kq - q - 1) % 4
            for hh in range(2):
                a(f"ds_write_b128 v{vT0}, {vr(ACC2 + 8*q + 4*hh, 4)} offset:{q*6144 + sl*2048 + hh*1024}")
        for i in range(8): a(f"v_mov_b32 v{R+24+i}, v{ACC2+8*kq+i}")
        if kq < 3: a("s_branch L_QJ")
    a("L_QJ:")
    srd(a, SDM, pOUT, 2048 * 896)
    T = R + 32
    vm.wait("R")
    for j, src in enumerate((RES, RES + 4)):
        for d in range(4):
            a(f"v_lshlrev_b32 v{T+8*j+2*d}, 16, v{src+d}\nv_and_b32 v{T+8*j+2*d+1}, s{sMASKHI}, v{src+d}")
    for i in range(8): a(f"v_add_f32 v{T+i}, v{T+i}, v{T+8+i}")
    a("s_waitcnt lgkmcnt(0)\ns_barrier")
    for k in range(3):
        for hh in range(2):
            a(f"ds_read_b128 {vr(R + 8*k + 4*hh, 4)}, v{vT1} offset:{k*2048 + hh*1024}")
    a("s_waitcnt lgkmcnt(0)")
    for i in range(8): a(f"v_add_f32 v{R+i}, v{R+i}, v{R+8+i}\nv_add_f32 v{R+16+i}, v{R+16+i}, v{R+24+i}")
    for i in range(8): a(f"v_add_f32 v{R+i}, v{R+i}, v{R+16+i}")
    for j in range(4): a(f"v_permlane32_swap_b32 v{R+j}, v{R+4+j}")
    for i in range(8): a(f"v_add_f32 v{R+i}, v{R+i}, v{T+i}")
    for p in range(4): a(f"v_cvt_pk_bf16_f32 v{T+p}, v{R+2*p}, v{R+2*p+1}")
    a(f"buffer_store_dwordx4 {vr(T,4)}, v{vXO}, {sr(SDM,4)}, 0 offen")
    a("L_END:")
    stamp(a, 51)
    if PROF:
        a("s_waitcnt vmcnt(0)"); stamp(a, 52); stamp_rt(a, 63)
        a(f"s_lshl_b32 s3, s2, 3\ns_add_u32 s3, s3, s{sW}\ns_lshl_b32 s3, s3, 8\ns_add_u32 s3, s3, {WS_PROF}\nv_lshlrev_b32 v255, 2, v{vL}\nbuffer_store_dword v254, v255, {sr(SH,4)}, s3 offen")
    a("L_EXIT:\ns_endpgm")

    RETI = f"s_setpc_b64 s[{sRET}:{sRET+1}]"
    def gelu_ops():
        ops = []
        ops += [(1, f"v_mul_f32 v{TMP+i}, v{UR+i}, v{UR+i}") for i in range(16)]
        ops += [(1, f"v_fma_f32 v{TMP+i}, v{TMP+i}, s{sK1}, v{vK0}") for i in range(16)]
        ops += [(1, f"v_mul_f32 v{TMP+i}, v{TMP+i}, v{UR+i}") for i in range(16)]
        ops += [(2, f"v_exp_f32 v{TMP+i}, v{TMP+i}") for i in range(16)]
        ops += [(1, f"v_add_f32 v{TMP+i}, 1.0, v{TMP+i}") for i in range(16)]
        ops += [(2, f"v_rcp_f32 v{TMP+i}, v{TMP+i}") for i in range(16)]
        ops += [(1, f"v_mul_f32 v{TMP+i}, v{TMP+i}, v{UR+i}") for i in range(16)]
        ops += [(1, f"v_cvt_pk_bf16_f32 v{PK+p}, v{TMP+2*p}, v{TMP+2*p+1}") for p in range(8)]
        ops += [(1, f"buffer_store_dwordx4 {vr(PK,4)}, v{vL16}, {sr(SH,4)}, s{sHOFF} offen sc1")]
        ops += [(1, f"buffer_store_dwordx4 {vr(PK+4,4)}, v{vL16}, {sr(SH,4)}, s{sHOFF} offen offset:1024 sc1")]
        return ops
    for nm, orient, every in (("GE", "T", 3), ("GN", "N", 4), ("GQ", "T", 2)):
        a.hist = []
        a(f"{nm}:")
        for s in range(3): trd(s)
        ops = gelu_ops() if nm == "GE" else []
        tot = sum(c for c, _ in ops); done = 0
        head = 38
        def emit_until(x):
            nonlocal done
            while ops and done + ops[0][0] <= x:
                c, t = ops.pop(0); a(t); done += c
        emit_until(head)
        if nm == "GE": a("s_setprio 1")
        for s in range(28):
            if s + 3 < 28: trd(s + 3)
            a(f"s_waitcnt lgkmcnt({2*min(3, 27-s)})")
            mf(s, orient, czero=(nm != "GE"))
            if s % every == 0 and s // every < 7: a(DLD)
            if s % every == 1 and s // every < 6: a(DUP)
            if nm == "GE" and s in (6, 13, 20):
                a("s_setprio 0")
                emit_until(head + (tot - head) * (s + 1) / 21.0 + 0.01)
                if s == 13:
                    a(f"s_waitcnt vmcnt(5)\ns_mov_b64 exec, s[{sHK}:{sHK+1}]\nbuffer_atomic_add v{vHK}, v{vZ}, {sr(SH,4)}, s{sMS} offen\ns_mov_b64 exec, -1")
                a("s_setprio 1")
        assert not ops
        if nm == "GE": a("s_setprio 0")
        a(RETI)
    a.hist = []
    a("OST_LOAD:"); ost_load(); a(RETI)
    a.hist = []
    a("OST_COMP:"); ost_comp(); a(RETI)
    a.hist = []
    a("EPI_GELU:")
    for c, t in gelu_ops(): a(t)
    a(RETI)
    a.hist = []
    a("PHI:")
    a(f"s_mov_b32 s3, {f32(LOG2E)}\ns_mov_b32 s{sT}, {f32(1e-6)}")
    for i in range(16): a(f"v_mul_f32 v{TMP+i}, s3, v{UR+i}")
    for i in range(16): a(f"v_exp_f32 v{TMP+i}, v{TMP+i} clamp")
    for i in range(16): a(f"v_max_f32 v{UR+i}, s{sT}, v{UR+i}")
    for i in range(16): a(f"v_add_f32 v{TMP+i}, v{TMP+i}, v{UR+i}")
    for p in range(8): a(f"v_cvt_pk_bf16_f32 v{TMP+p}, v{TMP+2*p}, v{TMP+2*p+1}")
    a(RETI)
    a.raw(".fill 512, 4, 0xbf800000")
    return name

def main(out):
    a = Asm()
    a.raw('.amdgcn_target "amdgcn-amd-amdhsa--gfx950"\n.text')
    name = gen(a)
    txt = HDR + f"; @launch grid=(256,1,1) block=(512,1,1) lds={LDS}\n" + a.text()
    txt += f""".section .rodata,"a"
.p2align 6
.amdhsa_kernel {name}
  .amdhsa_next_free_vgpr 256
  .amdhsa_next_free_sgpr 102
  .amdhsa_accum_offset 256
  .amdhsa_group_segment_fixed_size 0
  .amdhsa_kernarg_size 88
  .amdhsa_user_sgpr_count 2
  .amdhsa_user_sgpr_kernarg_segment_ptr 1
  .amdhsa_system_sgpr_workgroup_id_x 1
.end_amdhsa_kernel
"""
    open(out, "w").write(txt)
    print("nops inserted:", a.nops, "lines:", txt.count("\n"))

if __name__ == "__main__":
    main(sys.argv[1] if len(sys.argv) > 1 and not sys.argv[1].startswith("--") else "cdna_kernels/%s.s" % NAME)
```

```python
import sys, math
from asmlib import *

NAME = "parallel_sum__linear_attn_block__mixer_channel_mlp__prompt"
HDR = open("cdna_kernels/%s.s.ref" % NAME).read().split("; Override launch geometry")[0]
PROF = "--prof" in sys.argv
FINE = "--fine" in sys.argv
P2ONLY = "--p2only" in sys.argv
NOSC1 = "--nosc1" in sys.argv
NOCHK = "--nochk" in sys.argv
NOATOM = "--noatom" in sys.argv
PLAINST = "--plainst" in sys.argv
PF = "--nopf" not in sys.argv
EPF = "--epf" in sys.argv
CPF = "--nocpf" not in sys.argv
L2W = "--nol2w" not in sys.argv
L2V = "--nol2v" not in sys.argv
L2H = "--nol2h" not in sys.argv

WS_KV = 0xA00000
WS_CNT = 0xA10000
WS_CNT2 = 0xA20000
WS_SIZE = 0xA30000
WS_PROF = 0xB00000
if PROF: WS_SIZE = 0xD00000
UNIT = 28672
U = [0, UNIT, 2 * UNIT, 3 * UNIT, 4 * UNIT]
RING = [U[2], U[3], U[4], U[0], U[1]]
XB = 3 * UNIT
MISC = XB + 65536
BI = MISC
LCNT = 163840 - 64
SCR = [U[1], 5 * UNIT]
LDS = 163840
OOB_M0 = 0x38000
LOG2E = 1.4426950408889634
K0 = -2.0 * math.sqrt(2.0 / math.pi) * LOG2E
K1 = K0 * 0.044715
SPIN = 200000
M1, M2, MF_, MO, MH = 0, 1, 2, 3, 4
NKS = 144
W2U = 224 * 896

pX, pWQKV, pWO, pW1, pB1, pW2, pB2, pOUT, pDBG, pWS = 16, 18, 20, 24, 26, 28, 30, 32, 34, 36
SX, SW, SH, SD, SW2, SWO, SDM = 40, 44, 48, 52, 56, 60, 64
(sW, sRG, sG, sTYPE, sSTR, sT, sT2, sCH, sTT, sMASKHI, sONES, sK1, sHOFF, sTGB, sCHh, sKQ, sHEAD, sSPIN,
 sDO, sDSTEP, sTT2, sKH, sP2, sCT, sRT, sWL, sCB) = range(68, 95)
sRET = 96; sSEL = 98
sU = [4, 5, 6, 7, 8, 9, 10]
sMS = 11; sKC = 12; sPW = 13; sPUB = 14; sROT = 15; sHB = 95; sX0 = 100; sX1 = 101
sHK = 22
vHK = 123; vPF = 124
vL, vT0, vT1, vT2, vT3 = 1, 2, 3, 4, 5
vOX, vOW, vOW2, vXW, vAL, vA0, vA1, vL16, vK0, vBIA = 6, 7, 8, 9, 10, 11, 12, 13, 14, 15
vXR = [16, 17, 18, 19]
vMLO, vMV, vOV, vZ = 20, 21, 22, 23
ST = 24; PQ = 24
ACC = 32; BR = 48; AF = 64; TMP = 80; PK = 96; UR = 104
XR = 64
vFL = 120; vOWP1 = 121; vDM = 122
XF = 128
ACC2 = 24
ABL = [88, 96, 104, 112, 120, 224, 232, 240]; BB = 128; NB = 12
vB0, vB1, vBL0, vL16c, vXO, vOWP, vPL, vPK, vPO = 11, 12, 18, 9, 7, 6, 16, 17, 19
vOWQ = vOWP
sSL = [4, 5, 6, 7, 8, 9, 10, 99]
sWS = 98

def stamp(a, i, fine=False):
    if PROF and (FINE or not fine): a(f"s_memtime s[38:39]\ns_waitcnt lgkmcnt(0)\nv_writelane_b32 v254, s38, {i}")
def stamp_rt(a, i):
    if PROF: a(f"s_memrealtime s[38:39]\ns_waitcnt lgkmcnt(0)\nv_writelane_b32 v254, s38, {i}")
def srd(a, b, plo, size):
    a(f"s_mov_b64 s[{b}:{b+1}], s[{plo}:{plo+1}]\ns_mov_b32 s{b+2}, {size}\ns_mov_b32 s{b+3}, 0x20000")

class Cnt:
    def __init__(self, a, name, mx): self.a, self.name, self.mx, self.q = a, name, mx, []
    def add(self, tag, n=1): self.q += [tag] * n
    def wait(self, tag):
        idx = [i for i, t in enumerate(self.q) if t == tag]
        if not idx: return
        n = len(self.q) - 1 - idx[-1]
        self.a(f"s_waitcnt {self.name}({min(n, self.mx)})")
        self.q = self.q[idx[-1] + 1:]

def gen(a):
    name = NAME + "_kernel"
    a.raw(f".globl {name}\n.p2align 8\n.type {name},@function\n{name}:")
    MF = "v_mfma_f32_32x32x16_bf16"
    uid = [0]
    def L(p): uid[0] += 1; return f"L_{p}{uid[0]}"
    a("s_cmp_ge_u32 s2, 256\ns_cbranch_scc1 L_EXIT")
    if PROF: a("v_mov_b32 v254, 0")
    stamp(a, 0); stamp_rt(a, 62)
    a("s_load_dwordx16 s[16:31], s[0:1], 0\ns_load_dwordx4 s[32:35], s[0:1], 64\ns_load_dwordx2 s[36:37], s[0:1], 80")
    sWR = sHOFF
    a(f"""
    v_lshrrev_b32 v{vT0}, 6, v0
    v_and_b32 v{vL}, 63, v0
    v_readfirstlane_b32 s{sW}, v{vT0}
    s_and_b32 s{sT}, s2, 7
    s_lshr_b32 s{sT2}, s2, 3
    s_lshr_b32 s{sROT}, s{sT2}, 3
    s_lshr_b32 s{sRG}, s{sT}, 1
    s_lshl_b32 s{sRG}, s{sRG}, 2
    s_add_u32 s{sRG}, s{sRG}, s{sROT}
    s_lshl_b32 s{sRT}, s{sT}, 2
    s_add_u32 s{sRT}, s{sRT}, s{sROT}
    s_and_b32 s{sT2}, s{sT2}, 7
    s_lshr_b32 s{sTYPE}, s{sT2}, 2
    s_and_b32 s{sG}, s{sT}, 1
    s_lshl_b32 s{sG}, s{sG}, 2
    s_and_b32 s3, s{sT2}, 3
    s_add_u32 s{sG}, s{sG}, s3
    s_cmp_lg_u32 s{sT2}, 1
    s_cselect_b32 s{sP2}, 1, 0
    s_cmp_gt_u32 s{sT2}, 1
    s_cselect_b32 s3, 1, 0
    s_sub_u32 s{sCT}, s{sT2}, s3
    s_add_u32 s{sWR}, s{sW}, s{sT2}
    s_and_b32 s{sWR}, s{sWR}, 7
    s_lshr_b32 s{sCH}, s{sW}, 2
    s_and_b32 s{sTT}, s{sW}, 3
    v_lshrrev_b32 v{vT0}, 3, v{vL}
    v_and_b32 v{vT1}, 7, v{vL}
    v_mul_u32_u24 v{vOX}, 896, v{vT0}
    v_lshl_add_u32 v{vOX}, v{vT1}, 4, v{vOX}
    s_lshl_b32 s{sX0}, s{sRG}, 3
    s_add_u32 s{sX0}, s{sX0}, s{sWR}
    s_mul_i32 s{sX0}, s{sX0}, {16*896}
    s_add_u32 s{sX1}, s{sX0}, {8*896}
    v_lshlrev_b32 v{vL16}, 4, v{vL}
    v_mov_b32 v{vZ}, 0
    s_lshl_b32 s{sHEAD}, s{sG}, 1
    s_add_u32 s{sHEAD}, s{sHEAD}, s{sCH}
    s_mov_b32 s{SX+2}, {2048*896}
    s_mov_b32 s{SX+3}, 0x20000
    s_mov_b32 s{SH+2}, {WS_SIZE}
    s_mov_b32 s{SH+3}, 0x20000
    s_mov_b32 s{SDM+3}, 0x20000
    v_lshlrev_b32 v{vT2}, 7, v{vL}
    """)
    for i in range(4): a(f"v_mov_b32 v{ST+i}, 0")
    a(f"""
    s_waitcnt lgkmcnt(0)
    s_mov_b64 s[{SX}:{SX+1}], s[{pX}:{pX+1}]
    s_mov_b64 s[{SH}:{SH+1}], s[{pWS}:{pWS+1}]
    """)
    def xloads():
        for kb in range(7):
            for o in range(2):
                a(f"buffer_load_dwordx4 {vr(XR + (kb*2+o)*4, 4)}, v{vOX}, {sr(SX,4)}, s{sX0+o} offen offset:{kb*128}")
    def latepf():
        if not PF: return
        a(f"""
        s_lshr_b32 s3, s{sW}, 1
        s_cmp_eq_u32 s3, 2
        s_cselect_b64 s[{SDM}:{SDM+1}], s[{pW1}:{pW1+1}], s[{pW2}:{pW2+1}]
        s_mov_b32 s{sT}, 25
        s_mov_b32 s{SDM+2}, {448*3584}
        s_cmp_eq_u32 s3, 3
        s_cselect_b64 s[{SDM}:{SDM+1}], s[{pWQKV}:{pWQKV+1}], s[{SDM}:{SDM+1}]
        s_cselect_b32 s{sT}, 19, s{sT}
        s_cselect_b32 s{SDM+2}, {448*2688}, s{SDM+2}
        s_cmp_eq_u32 s3, 1
        s_cselect_b64 s[{SDM}:{SDM+1}], s[{pWO}:{pWO+1}], s[{SDM}:{SDM+1}]
        s_cselect_b32 s{sT}, 7, s{sT}
        s_cselect_b32 s{SDM+2}, {448*896}, s{SDM+2}
        s_and_b32 s3, s{sW}, 1
        s_lshl_b32 s{sSPIN}, s2, 1
        s_add_u32 s3, s3, s{sSPIN}
        s_mul_i32 s3, s3, s{sT}
        s_lshl_b32 s3, s3, 7
        v_lshlrev_b32 v{vDM}, 7, v{vL}
        s_bfm_b64 exec, s{sT}, 0
        buffer_load_dword v{vPF}, v{vDM}, {sr(SDM,4)}, s3 offen
        s_mov_b64 exec, -1
        """)
    a(f"s_setprio 3\ns_cmp_eq_u32 s{sCH}, 0\ns_cbranch_scc0 L_X1")
    xloads()
    a("s_setprio 0")
    a("s_branch L_X2\nL_X1:")
    if EPF:
        a(f"""
        s_cmp_gt_u32 s{sW}, 5
        s_cbranch_scc1 L_NPF
        s_cmp_eq_u32 s{sW}, 4
        s_cbranch_scc0 L_PFK
        s_mul_i32 s3, s2, 14
        v_add_u32 v{vT2}, s3, v{vL}
        v_lshrrev_b32 v{vT3}, 3, v{vT2}
        v_mul_u32_u24 v{vT3}, 3584, v{vT3}
        v_and_b32 v{vT2}, 7, v{vT2}
        v_lshl_add_u32 v{vT2}, v{vT2}, 7, v{vT3}
        s_mov_b64 exec, 0x3fff
        global_load_dword v{vFL}, v{vT2}, s[{pW1}:{pW1+1}]
        s_mov_b64 exec, -1
        s_branch L_NPF
L_PFK:
        s_mul_i32 s3, s2, 14
        v_add_u32 v{vT2}, s3, v{vL}
        v_lshrrev_b32 v{vT3}, 3, v{vT2}
        v_mul_u32_u24 v{vT3}, 2688, v{vT3}
        v_and_b32 v{vT2}, 7, v{vT2}
        v_lshl_add_u32 v{vT2}, v{vT2}, 7, v{vT3}
        s_mov_b64 exec, 0x3fff
        global_load_dword v{vFL}, v{vT2}, s[{pWQKV}:{pWQKV+1}] offset:896
        s_mov_b64 exec, -1
L_NPF:
        """)
    if CPF:
        a(f"""
        s_cmp_lg_u32 s{sW}, 6
        s_cbranch_scc1 L_NCP
        s_getpc_b64 s[{sRET}:{sRET+1}]
        s_lshr_b32 s3, s2, 3
        s_mul_i32 s3, s3, {7*128}
        v_add_u32 v{vT2}, s3, v{vT2}
        s_mov_b64 exec, 0x7f
        global_load_dword v{vFL}, v{vT2}, s[{sRET}:{sRET+1}]
        s_mov_b64 exec, -1
L_NCP:
        """)
    a(f"""
    s_cmp_eq_u32 s{sTYPE}, 0
    s_cbranch_scc0 L_ZM
    s_cmp_lg_u32 s{sRG}, 0
    s_cbranch_scc1 L_X2
    s_lshl_b32 s3, s{sG}, 13
    s_lshl_b32 s{sT}, s{sTT}, 11
    s_add_u32 s3, s3, s{sT}
    s_add_u32 s3, s3, {WS_KV}
    buffer_store_dwordx4 {vr(ST,4)}, v{vL16}, {sr(SH,4)}, s3 offen sc1
    buffer_store_dwordx4 {vr(ST,4)}, v{vL16}, {sr(SH,4)}, s3 offen offset:1024 sc1
    s_branch L_X2
L_ZM:
    s_mov_b64 s[{SDM}:{SDM+1}], s[{pB1}:{pB1+1}]
    s_mov_b32 s{SDM+2}, {1792*2}
    s_lshl_b32 s3, s{sTT}, 10
    buffer_load_dwordx4 {vr(BR,4)}, v{vL16}, {sr(SDM,4)}, s3 offen
    s_or_b32 s3, s{sG}, s{sTT}
    s_cmp_lg_u32 s3, 0
    s_cbranch_scc1 L_X2
    s_lshl_b32 s3, s{sRG}, 11
    s_add_u32 s3, s3, {WS_CNT2}
    buffer_store_dwordx4 {vr(ST,4)}, v{vL16}, {sr(SH,4)}, s3 offen sc1
    buffer_store_dwordx4 {vr(ST,4)}, v{vL16}, {sr(SH,4)}, s3 offen offset:1024 sc1
L_X2:
    """)
    srd(a, SD, pDBG, 256); srd(a, SW2, pW2, 1792 * 896); srd(a, SWO, pWO, 448 * 896)
    a(f"""
    s_add_u32 s{sWL}, s{sTT}, s{sROT}
    s_and_b32 s{sWL}, s{sWL}, 3
    s_cmp_eq_u32 s{sTYPE}, 0
    s_cselect_b64 s[{SW}:{SW+1}], s[{pWQKV}:{pWQKV+1}], s[{pW1}:{pW1+1}]
    s_mov_b32 s{SW+3}, 0x20000
    s_mov_b32 s{sSTR}, 3584
    s_cselect_b32 s{sSTR}, 2688, s{sSTR}
    s_mul_i32 s{SW+2}, s{sSTR}, 448
    s_cselect_b64 s[{sSEL}:{sSEL+1}], 0, -1
    s_mul_i32 s{sT}, s{sWL}, s{sSTR}
    s_cbranch_scc0 L_PM
    s_lshl_b32 s{sT}, s{sT}, 3
    s_mul_i32 s3, s{sG}, 112
    s_add_u32 s{sT}, s{sT}, s3
    s_add_u32 s{sU[0]}, s{sT}, 896
    s_add_u32 s{sU[1]}, s{sT}, {896 + 224*2688}
    s_add_u32 s{sU[2]}, s{sT}, 1792
    s_add_u32 s{sU[3]}, s{sT}, {1792 + 224*2688}
    s_mov_b32 s{sU[4]}, s{sT}
    s_add_u32 s{sU[5]}, s{sT}, {224*2688}
    s_mul_i32 s{sT2}, s{sCH}, 56
    s_branch L_PJ
L_PM:
    s_lshl_b32 s{sT}, s{sT}, 3
    s_lshl_b32 s{sCHh}, s{sG}, 6
    s_add_u32 s{sCHh}, s{sCHh}, 1024
    s_lshl_b32 s3, s{sG}, 7
    s_add_u32 s{sU[0]}, s{sT}, s3
    s_add_u32 s{sU[1]}, s{sU[0]}, {224*3584}
    s_add_u32 s{sU[2]}, s{sT}, s{sCHh}
    s_add_u32 s{sU[3]}, s{sU[0]}, 1536
    s_add_u32 s{sU[4]}, s{sU[0]}, {1536 + 224*3584}
    s_add_u32 s{sU[5]}, s{sU[0]}, 2560
    s_add_u32 s{sU[6]}, s{sU[0]}, {2560 + 224*3584}
    s_lshl_b32 s{sT2}, s{sCH}, 6
    s_add_u32 s{sCB}, s{sT2}, s3
L_PJ:
    s_lshl_b32 s{sDSTEP}, s{sSTR}, 5
    v_lshrrev_b32 v{vT2}, 2, v{vL}
    v_and_b32 v{vT2}, 4, v{vT2}
    v_xor_b32 v{vT2}, v{vT2}, v{vT1}
    v_mul_lo_u32 v{vT3}, v{vT0}, s{sSTR}
    v_lshl_add_u32 v{vOW}, v{vT2}, 4, v{vT3}
    v_mul_u32_u24 v{vOWP1}, 896, v{vT0}
    v_lshl_add_u32 v{vOWP1}, v{vT2}, 4, v{vOWP1}
    s_lshl_b32 s3, s{sCT}, 7
    v_add_u32 v{vOWP1}, s3, v{vOWP1}
    v_and_b32 v{vOW2}, 3, v{vT2}
    v_lshl_add_u32 v{vOW2}, v{vOW2}, 4, v{vT3}
    v_lshrrev_b32 v{vT2}, 2, v{vT2}
    s_mov_b32 s3, {224*3584}
    v_mul_lo_u32 v{vT2}, v{vT2}, s3
    v_add_u32 v{vOW2}, v{vOW2}, v{vT2}
    v_xor_b32 v{vT2}, v{vT0}, v{vT1}
    v_lshlrev_b32 v{vT2}, 4, v{vT2}
    v_lshl_add_u32 v{vXW}, v{vT1}, 9, v{vT2}
    s_lshr_b32 s3, s{sWR}, 1
    s_lshl_b32 s3, s3, 14
    s_and_b32 s{sT}, s{sWR}, 1
    s_lshl_b32 s{sT}, s{sT}, 8
    s_add_u32 s3, s3, s{sT}
    s_add_u32 s3, s3, {XB}
    v_add_u32 v{vXW}, s3, v{vXW}
    v_lshrrev_b32 v{vT2}, 5, v{vL}
    v_and_b32 v{vT3}, 31, v{vL}
    v_xor_b32 v{vT3}, v{vT3}, v{vT2}
    v_lshlrev_b32 v{vT3}, 4, v{vT3}
    v_lshl_add_u32 v{vT3}, v{vT2}, 9, v{vT3}
    s_lshl_b32 s3, s{sTT}, 14
    s_add_u32 s3, s3, {XB}
    """)
    for j in range(4):
        a(f"v_xor_b32 v{vXR[j]}, {32*j}, v{vT3}\nv_add_u32 v{vXR[j]}, s3, v{vXR[j]}")
    a(f"""
    v_and_b32 v{vT0}, 3, v{vL}
    v_lshlrev_b32 v{vT0}, 3, v{vT0}
    v_and_b32 v{vT1}, 16, v{vL}
    v_lshl_add_u32 v{vT0}, v{vT1}, 1, v{vT0}
    v_add_u32 v{vT0}, s{sT2}, v{vT0}
    v_and_b32 v{vT1}, 8, v{vL}
    v_lshlrev_b32 v{vT1}, 3, v{vT1}
    v_xor_b32 v{vT0}, v{vT0}, v{vT1}
    v_and_b32 v{vT1}, 12, v{vL}
    v_lshl_add_u32 v{vT0}, v{vT1}, 5, v{vT0}
    v_lshl_add_u32 v{vAL}, v{vT2}, 10, v{vT0}
    s_mov_b32 s{sMASKHI}, 0xffff0000
    s_mov_b32 s{sONES}, 0x3f803f80
    s_mov_b32 s{sK1}, {f32(K1)}
    v_mov_b32 v{vK0}, {f32(K0)}
    v_lshlrev_b32 v{vBIA}, 4, v{vT2}
    v_add_u32 v{vBIA}, {BI}, v{vBIA}
    s_lshl_b32 s{sTGB}, s{sRG}, 2
    s_add_u32 s{sTGB}, s{sTGB}, s{sTT}
    s_lshl_b32 s{sMS}, s{sRG}, 1
    s_add_u32 s{sMS}, s{sMS}, s{sTYPE}
    s_lshl_b32 s{sMS}, s{sMS}, 3
    s_add_u32 s{sMS}, s{sMS}, s{sG}
    s_lshl_b32 s{sMS}, s{sMS}, 7
    s_add_u32 s{sMS}, s{sMS}, {WS_CNT2}
    s_mul_i32 s{sTGB}, s{sTGB}, {NKS*1024}
    s_lshl_b32 s{sWL}, s{sWL}, 10
    s_mov_b32 m0, s{sWL}
    s_add_u32 s{sKQ}, s{sW}, s{sCT}
    s_and_b32 s{sKQ}, s{sKQ}, 7
    s_lshr_b32 s{sPW}, s{sRT}, 1
    s_lshl_b32 s{sPW}, s{sPW}, 11
    s_add_u32 s{sPW}, s{sPW}, {WS_CNT2}
    s_mul_i32 s{sHB}, s{sRT}, {2*NKS}
    s_add_u32 s{sHB}, s{sHB}, s{sKQ}
    s_lshl_b32 s{sHB}, s{sHB}, 10
    s_lshl_b32 s{sKC}, s{sG}, 7
    s_add_u32 s{sKC}, s{sKC}, {WS_CNT2}
    v_add_u32 v{vA0}, {U[0]}, v{vAL}
    v_add_u32 v{vA1}, {U[1]}, v{vAL}
    """)
    a(f"s_cmp_eq_u32 s{sCH}, 0\ns_cbranch_scc1 L_X3")
    xloads()
    a("s_setprio 1\nL_X3:")
    stamp(a, 1)
    for kb in range(7):
        a(f"s_waitcnt vmcnt({12 - 2*kb})")
        for d in range(4):
            for o in range(2):
                r = XR + (kb*2+o)*4 + d
                a(f"v_dot2c_f32_bf16 v{ST+o}, s{sONES}, v{r}\nv_dot2c_f32_bf16 v{ST+2+o}, v{r}, v{r}")
    stamp(a, 2)
    a(f"v_mov_b32 v{vOWP}, v{vOWP1}")
    for pat in ("quad_perm:[1,0,3,2]", "quad_perm:[2,3,0,1]", "row_half_mirror"):
        for i in range(4):
            a(f"v_add_f32_dpp v{ST+i}, v{ST+i}, v{ST+i} {pat} row_mask:0xf bank_mask:0xf")
    inv = f32(1.0 / 448.0); eps = f32(1e-5)
    for o in range(2): a(f"v_mul_f32 v{ST+o}, {inv}, v{ST+o}")
    for o in range(2): a(f"v_mul_f32 v{ST+2+o}, {inv}, v{ST+2+o}")
    for o in range(2): a(f"v_fma_f32 v{ST+2+o}, -v{ST+o}, v{ST+o}, v{ST+2+o}")
    for o in range(2): a(f"v_max_f32 v{ST+2+o}, 0, v{ST+2+o}")
    for o in range(2): a(f"v_add_f32 v{ST+4+o}, {eps}, v{ST+2+o}")
    for o in range(2): a(f"v_rsq_f32 v{ST+4+o}, v{ST+4+o}")
    for o in range(2): a(f"v_mul_f32 v{ST+2+o}, v{ST+2+o}, v{ST+4+o}")
    for o in range(2): a(f"v_mul_f32 v{ST+2+o}, v{ST+2+o}, v{ST+4+o}")
    for o in range(2): a(f"v_add_f32 v{ST+2+o}, {eps}, v{ST+2+o}")
    for o in range(2): a(f"v_rsq_f32 v{ST+2+o}, v{ST+2+o}")
    for o in range(2): a(f"v_cndmask_b32 v{ST+2+o}, 1.0, v{ST+2+o}, s[{sSEL}:{sSEL+1}]")
    a(f"v_mul_f32 v{ST+6}, v{ST+5}, v{ST+3}\nv_mul_f32 v{ST+4}, v{ST+4}, v{ST+2}")
    a(f"v_mul_f32 v{ST+5}, -v{ST}, v{ST+4}\nv_mul_f32 v{ST+7}, -v{ST+1}, v{ST+6}")
    NT = ACC
    def xw(kb, o, lk=None):
        a(f"ds_write_b128 v{vXW}, {vr(XR + (kb*2+o)*4, 4)} offset:{(kb%4)*4096 + o*128}")
        if lk: lk.add("w")
    def norm(kb):
        for o in range(2):
            t = NT + 8 * o
            r = XR + (kb*2+o)*4
            P = vr(ST+4+2*o, 2)
            for d in range(4): a(f"v_lshlrev_b32 v{t+2*d}, 16, v{r+d}\nv_and_b32 v{t+2*d+1}, s{sMASKHI}, v{r+d}")
            for d in range(4): a(f"v_pk_fma_f32 {vr(t+2*d,2)}, {vr(t+2*d,2)}, {P}, {P} op_sel:[0,0,1] op_sel_hi:[1,0,1]")
            for d in range(4): a(f"v_cvt_pk_bf16_f32 v{r+d}, v{t+2*d}, v{t+2*d+1}")
            if kb < 4: xw(kb, o)
    def xr(s, lk=None):
        a(f"ds_read_b128 {vr(XF + 4*s, 4)}, v{vXR[s%4]} offset:{(s%16)*1024}")
        if lk: lk.add(("x", s))
    def dmas(n, S, vo, src, step, lstep=4096):
        for i in range(n):
            a(f"buffer_load_dwordx4 v{vo}, {sr(S,4)}, s{src} offen lds\ns_add_u32 s{src}, s{src}, {step}\ns_add_u32 m0, m0, {lstep}")
    def burst(S, vo, slot, src, step):
        a(f"s_add_u32 m0, s{sWL}, {slot}"); dmas(7, S, vo, src, step)
    def only_ch(ch, f):
        l = L("C"); a(f"s_cmp_eq_u32 s{sCH}, {ch}\ns_cbranch_scc0 {l}"); f(); a(f"{l}:")
    ST_ = f"s{sDSTEP}"
    only_ch(0, lambda: dmas(7, SW, vOW, sU[0], ST_))
    norm(0); norm(1)
    only_ch(0, lambda: burst(SW, vOW, U[1], sU[1], ST_))
    norm(2); norm(3)
    def b_misc():
        lb = L("NB")
        a(f"s_cmp_eq_u32 s{sTYPE}, 0\ns_cbranch_scc1 {lb}")
        for d in range(4): a(f"v_lshlrev_b32 v{NT+2*d}, 16, v{BR+d}\nv_and_b32 v{NT+2*d+1}, s{sMASKHI}, v{BR+d}")
        a(f"s_lshl_b32 s3, s{sTT}, 11\ns_add_u32 s3, s3, {BI}\nv_lshlrev_b32 v{vT0}, 5, v{vL}\nv_add_u32 v{vT0}, s3, v{vT0}")
        a(f"ds_write_b128 v{vT0}, {vr(NT,4)}\nds_write_b128 v{vT0}, {vr(NT+4,4)} offset:16\n{lb}:")
        a(f"v_mov_b32 v{vT0}, {LCNT}\nv_mov_b32 v{vT2}, 0\nv_mov_b32 v{vT3}, 0\nds_write_b64 v{vT0}, v[{vT2}:{vT3}]\nds_write_b64 v{vT0}, v[{vT2}:{vT3}] offset:8\nds_write_b64 v{vT0}, v[{vT2}:{vT3}] offset:16\ns_setprio 0")
    only_ch(1, b_misc)
    stamp(a, 3)

    def setA(lo, hi, xor=False):
        a(f"v_add_u32 v{vA0}, {lo}, v{vAL}")
        if xor: a(f"v_xor_b32 v{vA1}, 64, v{vA0}")
        else: a(f"v_add_u32 v{vA1}, {hi}, v{vAL}")
    sc = [4]
    def call(l):
        a(f"s_call_b64 s[{sRET}:{sRET+1}], {l}")
        stamp(a, sc[0], True); sc[0] += 1
    def bar(fine=False):
        a("s_barrier"); stamp(a, sc[0], fine); sc[0] += 1
    def bias(cb_sgpr, add, lk=None):
        a(f"s_lshl_b32 s3, s{cb_sgpr}, 1\nv_add_u32 v{vT0}, s3, v{vBIA}")
        for i in range(4): a(f"ds_read_b128 {vr(BR+4*i,4)}, v{vT0} offset:{2*add + 32*i}")
        if lk: lk.add("b", 4)
    def hoff(cb_sgpr, add):
        a(f"s_lshl_b32 s3, s{cb_sgpr}, 5\ns_add_u32 s3, s3, {32*add}\ns_add_u32 s{sHOFF}, s3, s{sTGB}")
    def trd(s, lk=None):
        va = vA0 if s < 14 else vA1
        b = AF + 4 * (s % 4)
        a(f"ds_read_b64_tr_b16 {vr(b,2)}, v{va} offset:{(s%14)*2048}\nds_read_b64_tr_b16 {vr(b+2,2)}, v{va} offset:{(s%14)*2048+512}")
        if lk: lk.add(("t", s), 2)
    def mf(s, orient, czero=False):
        A, B = vr(AF + 4*(s%4), 4), vr(XF + 4*s, 4)
        if orient == "N": A, B = B, A
        C = ("0" if czero else vr(BR, 16)) if s == 0 else vr(ACC, 16)
        a(f"{MF} {vr(UR if s == 27 else ACC,16)}, {A}, {B}, {C}")
    def setD(S, vo, step, slotA, srcA, slotB, srcB, vo2=None):
        a(f"s_mov_b64 s[{SDM}:{SDM+1}], s[{S}:{S+1}]\ns_mov_b32 s{SDM+2}, s{S+2}\ns_mov_b32 s{sDSTEP}, {step}")
        a(f"s_mov_b32 s3, {slotB}\ns_mov_b32 s{sDO}, {srcB}\ns_cmp_eq_u32 s{sCH}, 0\ns_cselect_b32 s3, {slotA}, s3\ns_cselect_b32 s{sDO}, {srcA}, s{sDO}")
        if vo2 is None: a(f"v_mov_b32 v{vDM}, v{vo}")
        else: a(f"s_cselect_b64 vcc, -1, 0\nv_cndmask_b32 v{vDM}, v{vo2}, v{vo}, vcc")
        a(f"s_add_u32 m0, s{sWL}, s3")
    DLD = f"buffer_load_dwordx4 v{vDM}, {sr(SDM,4)}, s{sDO} offen lds"
    DUP = f"s_add_u32 m0, m0, 4096\ns_add_u32 s{sDO}, s{sDO}, s{sDSTEP}"
    def flags_load():
        a(f"v_lshlrev_b32 v{vT1}, 2, v{vL}\nbuffer_load_dword v{vFL}, v{vT1}, {sr(SD,4)}, 0 offen sc1")
    def flags_check():
        lc, ld = L("FC"), L("FD")
        a(f"""
        s_mov_b32 s{sSPIN}, 0
{lc}:
        v_cmp_ne_u32 vcc, 0, v{vFL}
        s_and_b32 s3, vcc_lo, 0xffff00ff
        s_cmp_eq_u32 s3, 0xffff00ff
        s_cbranch_scc1 {ld}
        s_add_u32 s{sSPIN}, s{sSPIN}, 1
        s_cmp_gt_u32 s{sSPIN}, {SPIN}
        s_cbranch_scc1 {ld}
        """)
        flags_load()
        a(f"s_waitcnt vmcnt(0)\ns_branch {lc}\n{ld}:")
    def flag_store(word):
        a(f"v_mov_b32 v{vT2}, 1\ns_mov_b64 exec, 1\nbuffer_store_dword v{vT2}, v{vZ}, {sr(SH,4)}, s{sMS} offen offset:{4*word} sc1\ns_mov_b64 exec, -1")
    def signal(m):
        if NOATOM: return
        l = L("SG")
        a(f"""
        v_mov_b32 v{vT1}, {LCNT + 4*m}
        v_mov_b32 v{vT2}, 1
        s_mov_b64 exec, 1
        ds_add_rtn_u32 v{vT3}, v{vT1}, v{vT2}
        s_mov_b64 exec, -1
        s_waitcnt lgkmcnt(0)
        v_readfirstlane_b32 s3, v{vT3}
        s_cmp_lg_u32 s3, {3 if m == MH else 7}
        s_cbranch_scc1 {l}
        """)
        flag_store({M1: 0, M2: 1, MF_: 2, MO: 1, MH: 3}[m])
        a(f"{l}:")
    PQ4 = 248
    PINFO = {M1: (PQ4, 0xff00), M2: (PQ4 + 1, 0xff00), MF_: (PQ4 + 2, 0xff00), MH: (PQ4 + 3, 0xff00), MO: (PQ4 + 1, 0xff), "K": (vPK, 0xffff)}
    def poll_issue(m):
        vreg, ex = PINFO[m]
        if m == "K": a(f"v_lshlrev_b32 v{vT0}, 11, v{vL}\ns_mov_b64 exec, {ex}\nbuffer_load_dword v{vPK}, v{vT0}, {sr(SH,4)}, s{sKC} offen sc1\ns_mov_b64 exec, -1")
        else: a(f"s_mov_b64 exec, {ex}\nbuffer_load_dwordx4 {vr(PQ4,4)}, v{vPO}, {sr(SH,4)}, s{sPW} offen sc1\ns_mov_b64 exec, -1")
    def poll_check(m):
        if P2ONLY or NOCHK: return
        vreg, ex = PINFO[m]
        lc, ld = L("PC"), L("PD")
        a(f"""
        s_mov_b32 s{sSPIN}, 0
{lc}:
        v_cmp_eq_u32 vcc, 1, v{vreg}
        s_and_b32 s3, vcc_lo, {ex}
        s_cmp_eq_u32 s3, {ex}
        s_cbranch_scc1 {ld}
        s_add_u32 s{sSPIN}, s{sSPIN}, 1
        s_cmp_gt_u32 s{sSPIN}, {SPIN}
        s_cbranch_scc1 {ld}
        s_sleep 4
        """)
        poll_issue(m)
        a(f"s_waitcnt vmcnt(0)\ns_branch {lc}\n{ld}:")
    def gelu_ops():
        ops = []
        ops += [(1, f"v_mul_f32 v{TMP+i}, v{UR+i}, v{UR+i}") for i in range(16)]
        ops += [(1, f"v_fma_f32 v{TMP+i}, v{TMP+i}, s{sK1}, v{vK0}") for i in range(16)]
        ops += [(1, f"v_mul_f32 v{TMP+i}, v{TMP+i}, v{UR+i}") for i in range(16)]
        ops += [(2, f"v_exp_f32 v{TMP+i}, v{TMP+i}") for i in range(16)]
        ops += [(1, f"v_add_f32 v{TMP+i}, 1.0, v{TMP+i}") for i in range(16)]
        ops += [(2, f"v_rcp_f32 v{TMP+i}, v{TMP+i}") for i in range(16)]
        ops += [(1, f"v_mul_f32 v{TMP+i}, v{TMP+i}, v{UR+i}") for i in range(16)]
        ops += [(1, f"v_cvt_pk_bf16_f32 v{PK+p}, v{TMP+2*p}, v{TMP+2*p+1}") for p in range(8)]
        ops += [(1, f"buffer_store_dwordx4 {vr(PK,4)}, v{vL16}, {sr(SH,4)}, s{sHOFF} offen sc1")]
        ops += [(1, f"buffer_store_dwordx4 {vr(PK+4,4)}, v{vL16}, {sr(SH,4)}, s{sHOFF} offen offset:1024 sc1")]
        return ops
    def phi_ops(dst):
        ops = [(1, f"v_mul_f32 v{TMP+i}, s{sK1}, v{UR+i}") for i in range(16)]
        ops += [(2, f"v_exp_f32 v{TMP+i}, v{TMP+i} clamp") for i in range(16)]
        ops += [(1, f"v_max_f32 v{UR+i}, s{sHOFF}, v{UR+i}") for i in range(16)]
        ops += [(1, f"v_add_f32 v{TMP+i}, v{TMP+i}, v{UR+i}") for i in range(16)]
        ops += [(1, f"v_cvt_pk_bf16_f32 v{dst+p}, v{TMP+2*p}, v{TMP+2*p+1}") for p in range(8)]
        return ops
    def round_(orient, ops, extra, czero, vmc=None):
        ops = list(ops)
        for s in range(3): trd(s)
        tot = sum(c for c, _ in ops); done = [0]; head = tot // 4
        def emit_until(x):
            while ops and done[0] + ops[0][0] <= x:
                c, t = ops.pop(0); a(t); done[0] += c
                if vmc is not None and t.startswith("buffer"): vmc.add("S")
        emit_until(head)
        if tot: a("s_setprio 1")
        for s in range(28):
            if s + 3 < 28: trd(s + 3)
            a(f"s_waitcnt lgkmcnt({2*min(3, 27-s)})")
            mf(s, orient, czero=czero)
            if s in extra: extra[s]()
            if s in (6, 13, 20) and (tot or ('v', s) in extra):
                if tot: a("s_setprio 0")
                emit_until(head + (tot - head) * (s + 1) / 21.0 + 0.01)
                if ('v', s) in extra: extra[('v', s)]()
                if tot: a("s_setprio 1")
        assert not ops
        if tot: a("s_setprio 0")
        stamp(a, sc[0], True); sc[0] += 1
    def dstream(every, n=7, vmc=None, tag="D"):
        ex = {}
        for i in range(n):
            def f():
                a(DLD)
                if vmc is not None: vmc.add(tag)
            ex[i * every] = f
            if i < n - 1: ex[i * every + 1] = lambda: a(DUP)
        return ex
    def p2_setup(slots):
        a(f"s_lshl_b32 s3, s{sKQ}, 11")
        for j in range(8): a(f"s_add_u32 s{sSL[j]}, s3, {slots[j]}")
        a(f"s_mov_b32 s{sHK}, {slots[0]}")
        for j in range(1, 8): a(f"s_cmp_eq_u32 s{sKQ}, {j}\ns_cselect_b32 s{sHK}, {slots[j]}, s{sHK}")
        a(f"""
        s_mul_i32 s{sWS}, s{sKQ}, {16*896}
        s_lshr_b32 s3, s{sKQ}, 1
        s_mul_i32 s{sKH}, s3, {28*896}
        s_and_b32 s3, s{sKQ}, 1
        s_mul_i32 s3, s3, {16*896}
        s_add_u32 s{sKH}, s{sKH}, s3
        v_lshlrev_b32 v{vPO}, 7, v{vL}
        v_and_b32 v{vT0}, 3, v{vL}
        v_lshlrev_b32 v{vT0}, 3, v{vT0}
        v_and_b32 v{vT1}, 16, v{vL}
        v_lshl_add_u32 v{vT0}, v{vT1}, 1, v{vT0}
        v_and_b32 v{vT1}, 8, v{vL}
        v_lshl_add_u32 v{vT0}, v{vT1}, 3, v{vT0}
        v_and_b32 v{vT1}, 12, v{vL}
        v_lshl_add_u32 v{vT0}, v{vT1}, 5, v{vT0}
        v_lshrrev_b32 v{vT2}, 5, v{vL}
        v_lshl_add_u32 v{vBL0}, v{vT2}, 9, v{vT0}
        v_add_u32 v{vL16c}, {NKS*1024}, v{vL16}
        """)
    def Whalf(j, c):
        S, base, imm = (SW2, sWS, j * 8 * 16 * 896) if j < 14 else (SWO, sKH, (j - 14) * 112 * 896)
        a(f"s_add_u32 m0, s{sSL[j%8]}, {1024*c}\ns_add_u32 s3, s{base}, {imm + c*8*896}\nbuffer_load_dwordx4 v{vOWQ}, {sr(S,4)}, s3 offen lds")
    def Hhalf(j, t):
        b = BB + (j % NB) * 8 + 4 * t
        a(f"s_add_u32 s3, s{sHB}, {j*8192}\nbuffer_load_dwordx4 {vr(b,4)}, v{vL16c if t else vL16}, {sr(SH,4)}, s3 offen sc1")
    def zflag_pub(cond_a, cond_b, idx, off):
        l = L("ZF")
        a(f"s_xor_b32 s3, s{sW}, 4\ns_or_b32 s3, s3, s{cond_a}\ns_cmp_lg_u32 s3, 0\ns_cbranch_scc1 {l}\nv_mov_b32 v{vT2}, 1\ns_lshl_b32 s3, s{idx}, 2")
        a(f"buffer_store_dword v{vT2}, v{vZ}, {sr(SD,4)}, s3 offen offset:{off} sc1\n{l}:")
    def midx(dst):
        a(f"s_lshl_b32 s{dst}, s{sROT}, 2\ns_and_b32 s3, s{sG}, 3\ns_add_u32 s{dst}, s{dst}, s3\ns_lshl_b32 s{dst}, s{dst}, 3\ns_add_u32 s{dst}, s{dst}, s{sW}")
    def pf_lin(S, n, base):
        midx(sT)
        a(f"s_mul_i32 s{sT}, s{sT}, {n*128}\ns_add_u32 s{sT}, s{sT}, {base}\nv_lshlrev_b32 v{vT1}, 7, v{vL}\ns_bfm_b64 exec, {n}, 0")
        a(f"buffer_load_dword v{vPF}, v{vT1}, {sr(S,4)}, s{sT} offen\ns_mov_b64 exec, -1")
    def pf_w2(i):
        if not L2W: return
        a(f"""
        s_lshl_b32 s{sT}, s{sROT}, 2
        s_and_b32 s3, s{sG}, 3
        s_add_u32 s{sT}, s{sT}, s3
        s_lshl_b32 s{sT}, s{sT}, 2
        s_add_u32 s{sT}, s{sT}, s{sTT}
        s_add_u32 s3, s2, {i}
        s_and_b32 s3, s3, 3
        s_cmp_eq_u32 s3, 3
        s_cselect_b64 s[{SDM}:{SDM+1}], s[{SWO}:{SWO+1}], s[{SW2}:{SW2+1}]
        s_cselect_b32 s{SDM+2}, s{SWO+2}, s{SW2+2}
        s_cselect_b32 s{sT2}, 49, 61
        s_cselect_b32 s{sSPIN}, 0, {128*7}
        s_cselect_b32 s3, 0, s3
        s_lshl_b32 s3, s3, 6
        s_add_u32 s{sT}, s{sT}, s3
        s_mul_i32 s{sT}, s{sT}, s{sT2}
        s_add_u32 s{sT}, s{sT}, s{sSPIN}
        s_lshl_b32 s{sT}, s{sT}, 7
        s_bfm_b64 exec, s{sT2}, 0
        buffer_load_dword v{vPF}, v{vPO}, {sr(SDM,4)}, s{sT} offen
        s_mov_b64 exec, -1
        """)
    def pf_vq():
        midx(sT)
        a(f"""
        s_mul_i32 s{sT}, s{sT}, 28
        v_add_u32 v{vT1}, s{sT}, v{vL}
        v_lshrrev_b32 v{vT2}, 3, v{vT1}
        v_mul_u32_u24 v{vT2}, 2688, v{vT2}
        v_and_b32 v{vT3}, 3, v{vT1}
        v_lshl_add_u32 v{vT2}, v{vT3}, 7, v{vT2}
        v_bfe_u32 v{vT3}, v{vT1}, 2, 1
        v_mul_u32_u24 v{vT3}, 1792, v{vT3}
        v_add_u32 v{vT2}, v{vT2}, v{vT3}
        s_lshr_b32 s3, s{sG}, 2
        s_mul_i32 s3, s3, 384
        v_add_u32 v{vT2}, s3, v{vT2}
        s_bfm_b64 exec, 28, 0
        global_load_dword v{vPF}, v{vT2}, s[{pWQKV}:{pWQKV+1}]
        s_mov_b64 exec, -1
        """)
    def gemm_first(orient):
        T = orient == "T"
        lk = Cnt(a, "lgkmcnt", 15)
        if T: bias(sCB, 0, lk)
        xr(0, lk); trd(0, lk); xr(1, lk); trd(1, lk); xr(2, lk); trd(2, lk); xr(3, lk)
        a(f"s_mul_i32 s3, s{sCH}, s{sDSTEP}\ns_lshl_b32 s3, s3, 2\ns_add_u32 s{sU[2]}, s{sU[2]}, s3\ns_lshl_b32 s3, s{sCH}, 14\ns_add_u32 s3, s3, {U[2]}\ns_add_u32 m0, s{sWL}, s3")
        if T: zflag_pub(sG, 0, sRG, 64)
        else: zflag_pub(sRG, 0, sG, 0)
        nops = []
        for q, (kb, o) in enumerate([(kb, o) for kb in range(4, 7) for o in range(2)]):
            t = TMP + 8 * (q % 2); r = XR + (kb*2+o)*4
            for d in range(4): nops += [f"v_lshlrev_b32 v{t+2*d}, 16, v{r+d}", f"v_and_b32 v{t+2*d+1}, s{sMASKHI}, v{r+d}"]
            for d in range(8): nops.append(f"v_fma_f32 v{t+d}, v{t+d}, v{ST+4+2*o}, v{ST+5+2*o}")
            for d in range(4): nops.append(f"v_cvt_pk_bf16_f32 v{r+d}, v{t+2*d}, v{t+2*d+1}")
            nops.append(("w", kb, o))
        pend = []
        def nrm(n, canw):
            for _ in range(n):
                if not nops: break
                x = nops.pop(0)
                if isinstance(x, tuple): pend.append(x)
                else: a(x)
            if canw:
                while pend:
                    _, kb, o = pend.pop(0); xw(kb, o, lk)
        nrm(12, False)
        S3 = 14
        for s in range(28):
            if s == 5:
                lk.wait(("x", 15)); bar(True)
            if s == 11:
                pass
            if s == S3:
                assert not nops and not pend
                lk.wait("w"); a(f"s_waitcnt vmcnt({6 if PF else 5})"); bar(True)
                for z in (14, 15, 16): trd(z, lk)
                for x in range(16, 22): xr(x, lk)
            if s == 16:
                for x in range(22, 28): xr(x, lk)
            if s == 19:
                lk.wait(("x", 27)); bar(True)
                if T: setD(SW, vOW, 32 * 3584, U[3], f"s{sU[3]}", U[4], f"s{sU[4]}")
                else:
                    a(f"s_mul_i32 s3, s{sCH}, {4*32*2688}\ns_add_u32 s{sU[3]}, s{sU[3]}, s3\ns_lshl_b32 s3, s{sCH}, 14\ns_add_u32 s3, s3, {U[3]}\ns_add_u32 m0, s{sWL}, s3")
            if s + 3 < 28 and not (s < S3 and s + 3 >= 14): trd(s + 3, lk)
            if s < 4:
                for x in range(4 + 3*s, 7 + 3*s): xr(x, lk)
            lk.wait(("t", s)); lk.wait(("x", s))
            mf(s, orient, czero=not T)
            if s < S3: nrm(9, s >= 5)
            if s in (1, 3, 6): dmas(1, SW, vOW2 if T else vOW, sU[2], ST_)
            if s == 8: only_ch(0, lambda: dmas(1, SW, vOW2 if T else vOW, sU[2], ST_))
            if s == 9: latepf()
            if s == 10:
                if T and L2V: pf_vq()
                else: a(f"s_mov_b64 exec, 1\nbuffer_load_dword v{vPF}, v{vZ}, {sr(SX,4)}, 0 offen\ns_mov_b64 exec, -1")
            if s >= 20:
                if T and s < 27: a(DLD + "\n" + DUP)
                if not T and s in (20, 22, 24): dmas(1, SW, vOW, sU[3], 32 * 2688)
                if not T and s == 26: only_ch(0, lambda: dmas(1, SW, vOW, sU[3], 32 * 2688))
        stamp(a, sc[0], True); sc[0] += 1

    a("s_waitcnt vmcnt(7) lgkmcnt(0)"); bar()
    a(f"s_cmp_eq_u32 s{sTYPE}, 0\ns_cbranch_scc1 L_ATT")
    SL_M = [U[2]] + [XB + 16384*i for i in range(4)] + [16384*i for i in range(3)]
    gemm_first("T")
    flags_load()
    hoff(sCB, 0)
    setD(SW, vOW, 32 * 3584, U[0], f"s{sU[5]}", U[1], f"s{sU[6]}")
    p2_setup(SL_M)
    a(f"s_cmp_eq_u32 s{sCH}, 0\ns_cbranch_scc0 L_MB")
    bias(sCHh, 0); setA(U[2], 0, xor=True)
    a("s_waitcnt vmcnt(8)"); bar()
    round_("T", gelu_ops(), dstream(3), False)
    bias(sCB, 1536); setA(U[3], U[4]); hoff(sCHh, 0)
    a("s_waitcnt vmcnt(9)"); flags_check(); bar()
    round_("T", gelu_ops(), {0: lambda: Whalf(0, 0), 2: lambda: Whalf(0, 1),
                             ('v', 13): lambda: (a("s_waitcnt vmcnt(2)"), signal(M1))}, False)
    a("s_branch L_MJ")
    a("L_MB:"); sc[0] -= 4
    a("s_waitcnt vmcnt(8)"); bar()
    for i in range(7): a(DLD + "\n" + DUP)
    call("EPI_GELU")
    bias(sCB, 1536); setA(U[3], U[4])
    a("s_waitcnt vmcnt(9)"); flags_check()
    a("s_waitcnt vmcnt(0)"); signal(M1)
    pf_w2(0)
    bar()
    round_("T", [], {0: lambda: Whalf(0, 0), 2: lambda: Whalf(0, 1),
                     8: lambda: pf_w2(1), 16: lambda: pf_w2(2), 24: lambda: pf_w2(3)}, False)
    a("L_MJ:")
    bias(sCB, 2560); setA(U[0], U[1]); hoff(sCB, 1536)
    bar()
    ex = {}
    for i in range(8): ex[3*i] = (lambda i=i: Whalf(1 + i // 2, i % 2))
    ex[('v', 13)] = lambda: only_ch(0, lambda: (a("s_waitcnt vmcnt(5)"), signal(MH)))
    round_("T", gelu_ops(), ex, False)
    hoff(sCB, 2560)
    bar()
    a("s_setprio 3")
    poll_issue(M1)
    for j in (5, 6): Whalf(j, 0); Whalf(j, 1)
    call("EPI_GELU")
    a("s_waitcnt vmcnt(6)"); signal(M2)
    a(f"s_mov_b32 s{sPUB}, 0\ns_branch L_P2")

    a("L_ATT:"); sc[0] = 5
    gemm_first("N")
    a(f"""
    v_and_b32 v{vT0}, 31, v{vL}
    v_cmp_gt_u32 s[{sDO}:{sDO+1}], 28, v{vT0}
    v_cmp_eq_u32 vcc, 28, v{vT0}
    v_mov_b32 v{vT1}, s{sONES}
    v_cndmask_b32 v{vMV}, 0, -1, s[{sDO}:{sDO+1}]
    v_cndmask_b32 v{vOV}, 0, v{vT1}, vcc
    v_cmp_gt_u32 vcc, 32, v{vL}
    v_cndmask_b32 v{vMLO}, 0, -1, vcc
    """)
    flags_load()
    a(f"s_mov_b32 s{sK1}, {f32(LOG2E)}\ns_mov_b32 s{sHOFF}, {f32(1e-6)}")
    setA(U[2], U[3])
    setD(SW, vOW, 32 * 2688, U[0], f"s{sU[5]}", U[4], f"s{sU[4]}")
    a("s_waitcnt vmcnt(0)"); bar()
    round_("N", phi_ops(PK), dstream(4), True)
    VV = TMP
    for p in range(8): a(f"v_cvt_pk_bf16_f32 v{VV+p}, v{UR+2*p}, v{UR+2*p+1}")
    for p in range(8): a(f"v_and_or_b32 v{VV+p}, v{VV+p}, v{vMV}, v{vOV}")
    a(f"{MF} {vr(ACC,16)}, {vr(PK,4)}, {vr(VV,4)}, 0\n{MF} {vr(ACC,16)}, {vr(PK+4,4)}, {vr(VV+4,4)}, {vr(ACC,16)}")
    a(f"""
    s_mul_i32 s{sT}, s{sCH}, {SCR[1] - SCR[0]}
    s_add_u32 s{sT}, s{sT}, {SCR[0]}
    s_lshl_b32 s3, s{sTT}, 10
    s_add_u32 s3, s3, s{sT}
    v_add_u32 v{vT1}, s3, v{vL16}
    s_lshl_b32 s3, s{sTT}, 12
    s_add_u32 s3, s3, s{sT}
    v_add_u32 v{vT3}, s3, v{vL16}
    """)
    for q in range(4): a(f"ds_write_b128 v{vT1}, {vr(ACC+4*q,4)} offset:{4096*q}")
    flags_check()
    a("s_waitcnt lgkmcnt(0)"); bar()
    for k in range(4): a(f"ds_read_b128 {vr(TMP+4*k,4)}, v{vT3} offset:{1024*k}")
    a(f"""
    s_lshl_b32 s3, s{sHEAD}, 12
    s_lshl_b32 s{sT}, s{sTT}, 10
    s_add_u32 s{sT}, s3, s{sT}
    s_add_u32 s{sT}, s{sT}, {WS_KV}
    v_lshlrev_b32 v{vT0}, 2, v{vL}
    """)
    setA(U[4], U[0])
    a(f"s_cmp_eq_u32 s{sP2}, 0\ns_cselect_b32 s{SW2+2}, 0, s{SW2+2}")
    a("s_waitcnt lgkmcnt(0)")
    for j in range(4): a(f"v_add_f32 v{TMP+j}, v{TMP+j}, v{TMP+4+j}\nv_add_f32 v{TMP+8+j}, v{TMP+8+j}, v{TMP+12+j}")
    for j in range(4): a(f"v_add_f32 v{TMP+j}, v{TMP+j}, v{TMP+8+j}")
    for j in range(4): a(f"buffer_atomic_add_f32 v{TMP+j}, v{vT0}, {sr(SH,4)}, s{sT} offen offset:{256*j}")
    SL_A = [U[2], U[2] + 16384, U[2] + 32768, 32768, U[2] + 49152, U[2] + 65536, 0, 16384]
    p2_setup(SL_A)
    a("s_waitcnt vmcnt(4)"); bar()
    ex = {}
    for i in range(8): ex[3*i] = (lambda i=i: Whalf(i // 2, i % 2))
    round_("T", [], ex, True)
    a("s_waitcnt vmcnt(8)"); bar()
    a("s_setprio 3")
    lx = L("KS")
    a(f"s_cmp_lg_u32 s{sW}, 0\ns_cbranch_scc1 {lx}"); flag_store(0); a(f"{lx}:")
    Whalf(4, 0); Whalf(4, 1)
    poll_issue(M1)
    for j in (5, 6): Whalf(j, 0); Whalf(j, 1)
    for c, t in phi_ops(PQ): a(t)
    for p in (6, 7): a(f"v_and_b32 v{PQ+p}, v{vMLO}, v{PQ+p}")
    a(f"s_mov_b32 s{sPUB}, 2\ns_waitcnt vmcnt(4)\ns_cmp_eq_u32 s{sP2}, 0\ns_cbranch_scc1 L_AI")
    a("s_branch L_P2\nL_AI:")
    poll_issue("K"); a("s_waitcnt vmcnt(0)")
    a(f"s_call_b64 s[{sRET}:{sRET+1}], OST_LOAD\ns_waitcnt vmcnt(0)\ns_call_b64 s[{sRET}:{sRET+1}], OST_COMP\ns_waitcnt vmcnt(0)")
    signal(MO)
    a("s_branch L_END")
    KVR = BB + 48; KP = BB + 64; OACC = 40; OP = 32
    def ost_load():
        poll_check("K")
        a(f"s_lshl_b32 s3, s{sHEAD}, 12\ns_add_u32 s3, s3, {WS_KV}\nv_lshlrev_b32 v{vT0}, 2, v{vL}")
        for r in range(16): a(f"buffer_load_dword v{KVR+r}, v{vT0}, {sr(SH,4)}, s3 offen offset:{256*r} sc1")
    def ost_comp():
        a(f"s_lshl_b32 s3, s{sHEAD}, 11\ns_add_u32 s3, s3, {112*1024}\ns_add_u32 s{sHOFF}, s{sTGB}, s3")
        for p in range(8): a(f"v_cvt_pk_bf16_f32 v{KP+p}, v{KVR+2*p}, v{KVR+2*p+1}")
        for p in (6, 7): a(f"v_and_b32 v{KP+p}, v{vMLO}, v{KP+p}")
        a(f"{MF} {vr(OACC,16)}, {vr(KP,4)}, {vr(PQ,4)}, 0\n{MF} {vr(OACC,16)}, {vr(KP+4,4)}, {vr(PQ+4,4)}, {vr(OACC,16)}")
        a(f"v_mov_b32 v{vT1}, v{OACC+12}\nv_mov_b32 v{vT2}, v{OACC+12}\nv_permlane32_swap_b32 v{vT1}, v{vT2}")
        a(f"v_add_f32 v{vT2}, {f32(1e-6)}, v{vT2}\nv_rcp_f32 v{vT2}, v{vT2}")
        for i in range(16): a(f"v_mul_f32 v{OACC+i}, v{OACC+i}, v{vT2}")
        for p in range(8): a(f"v_cvt_pk_bf16_f32 v{OP+p}, v{OACC+2*p}, v{OACC+2*p+1}")
        for p in (6, 7): a(f"v_and_b32 v{OP+p}, v{vMLO}, v{OP+p}")
        a(f"buffer_store_dwordx4 {vr(OP,4)}, v{vL16}, {sr(SH,4)}, s{sHOFF} offen sc1")
        a(f"buffer_store_dwordx4 {vr(OP+4,4)}, v{vL16}, {sr(SH,4)}, s{sHOFF} offen offset:1024 sc1")

    a("L_P2:")
    stamp(a, 30)
    vm = Cnt(a, "vmcnt", 63); lk = Cnt(a, "lgkmcnt", 15)
    vm.add("OLD")
    def TRj(j):
        vm.wait(("W", j))
        a(f"v_add_u32 v{vB0}, s{sSL[j%8]}, v{vBL0}\nv_xor_b32 v{vB1}, 64, v{vB0}")
        if len(lk.q) > 8: a("s_waitcnt lgkmcnt(8)"); lk.q = lk.q[-8:]
        for c in range(2):
            b = ABL[j % 8] + 4 * c
            a(f"ds_read_b64_tr_b16 {vr(b,2)}, v{vB0+c}\nds_read_b64_tr_b16 {vr(b+2,2)}, v{vB0+c} offset:1024")
        lk.add(("A", j), 4)
    def Wj(j):
        lk.wait(("A", j - 8)); Whalf(j, 0); Whalf(j, 1); vm.add(("W", j), 2)
    def Hj(j):
        Hhalf(j, 0); Hhalf(j, 1); vm.add(("H", j), 2)
    def Mj(j):
        vm.wait(("H", j)); lk.wait(("A", j))
        for t in range(2):
            for c in range(2):
                D = vr(ACC2 + 32*t + 16*c, 16)
                a(f"{MF} {D}, {vr(ABL[j%8]+4*c,4)}, {vr(BB+(j%NB)*8+4*t,4)}, {'0' if j == 0 else D}")
    def only(val, f):
        l = L("O"); a(f"s_cmp_eq_u32 s{sPUB}, {val}\ns_cbranch_scc0 {l}"); f(); a(f"{l}:")
    def P(m): poll_issue(m); vm.add("P")
    def chk(m): vm.wait("P"); poll_check(m)
    Whalf(7, 0); Whalf(7, 1); vm.add(("W", 7), 2)
    for j in range(5): TRj(j)
    poll_check(M1)
    Hj(0); Hj(1)
    only(2, lambda: poll_issue("K"))
    vm.wait("OLD")
    only(0, lambda: signal(MF_))
    stamp(a, 31)
    a("s_setprio 2")
    Hj(2); Hj(3)
    only(2, lambda: a(f"s_setprio 3\ns_waitcnt vmcnt(4)\ns_call_b64 s[{sRET}:{sRET+1}], OST_LOAD\ns_setprio 2"))
    for j in (8, 9): Wj(j)
    P(MH)
    Wj(10)
    only(2, lambda: a(f"s_setprio 3\ns_waitcnt vmcnt(7)\ns_call_b64 s[{sRET}:{sRET+1}], OST_COMP\ns_setprio 2"))
    for j in (5, 6, 7): TRj(j)
    for j in (11, 12): Wj(j)
    chk(MH)
    Hj(4); Hj(5)
    only(2, lambda: (a("s_setprio 3\ns_waitcnt vmcnt(8)"), signal(MO), a("s_setprio 2")))
    P(M2)
    for j in (13, 14, 15): Wj(j)
    stamp(a, 32)
    Mj(0); Mj(1)
    chk(M2)
    a("s_setprio 1")
    stamp(a, 33)
    for j in (6, 7, 8, 9): Hj(j)
    P(MF_)
    TRj(8); TRj(9)
    for j in (2, 3, 4, 5): Mj(j)
    Wj(16); Wj(17)
    for j in (10, 11, 12): TRj(j)
    chk(MF_)
    a("s_setprio 0")
    stamp(a, 34)
    for j in (10, 11, 12, 13): Hj(j)
    P(MO)
    TRj(13)
    for j in (6, 7, 8, 9): Mj(j)
    TRj(14); TRj(15)
    chk(MO)
    stamp(a, 35)
    for j in (14, 15, 16, 17): Hj(j)
    RES = 248
    srd(a, SDM, pB2, 896)
    a(f"""
    v_and_b32 v{vT0}, 31, v{vL}
    v_lshrrev_b32 v{vT2}, 5, v{vL}
    v_mul_u32_u24 v{vXO}, 896, v{vT0}
    v_lshl_add_u32 v{vXO}, v{vT2}, 4, v{vXO}
    s_lshr_b32 s{sT2}, s{sKQ}, 2
    s_lshl_b32 s3, s{sRT}, 1
    s_add_u32 s3, s3, s{sT2}
    s_mul_i32 s3, s3, {32*896}
    s_lshl_b32 s{sT}, s{sCT}, 7
    s_and_b32 s{sT2}, s{sKQ}, 3
    s_lshl_b32 s{sT2}, s{sT2}, 5
    s_add_u32 s{sT}, s{sT}, s{sT2}
    s_add_u32 s3, s3, s{sT}
    v_add_u32 v{vXO}, s3, v{vXO}
    v_lshlrev_b32 v{vT1}, 4, v{vT2}
    buffer_load_dwordx4 {vr(RES,4)}, v{vXO}, {sr(SX,4)}, 0 offen
    buffer_load_dwordx4 {vr(RES+4 if not PROF else 20,4)}, v{vT1}, {sr(SDM,4)}, s{sT} offen
    """)
    vm.add("R", 2)
    TRj(16); TRj(17)
    for j in range(10, 18): Mj(j)
    stamp(a, 50)
    for d in range(8):
        a(f"v_add_u32 v{vT0 + d % 2}, s{sSL[d]}, v{vL16}")
        for hh in range(2): a(f"ds_write_b128 v{vT0 + d % 2}, {vr(ACC2 + 8*d + 4*hh, 4)} offset:{hh*1024}")
    a(f"v_add_u32 v{vT2}, s{sHK}, v{vL16}")
    srd(a, SDM, pOUT, 2048 * 896)
    R = BB + 16; T = BB
    vm.wait("R")
    for j, src in enumerate((RES, RES+4 if not PROF else 20)):
        for d in range(4):
            a(f"v_lshlrev_b32 v{T+8*j+2*d}, 16, v{src+d}\nv_and_b32 v{T+8*j+2*d+1}, s{sMASKHI}, v{src+d}")
    for i in range(8): a(f"v_add_f32 v{T+i}, v{T+i}, v{T+8+i}")
    a("s_waitcnt lgkmcnt(0)\ns_barrier")
    stamp(a, 49)
    for k in range(8):
        for hh in range(2):
            if k == 6 and hh == 0: a("s_waitcnt lgkmcnt(4)")
            a(f"ds_read_b128 {vr(R + 8*k + 4*hh, 4)}, v{vT2} offset:{k*2048 + hh*1024}")
    for k in (0, 2):
        for i in range(8): a(f"v_add_f32 v{R+8*k+i}, v{R+8*k+i}, v{R+8*k+8+i}")
    for i in range(8): a(f"v_add_f32 v{R+i}, v{R+i}, v{R+16+i}")
    a("s_waitcnt lgkmcnt(0)")
    for k in (4, 6):
        for i in range(8): a(f"v_add_f32 v{R+8*k+i}, v{R+8*k+i}, v{R+8*k+8+i}")
    for i in range(8): a(f"v_add_f32 v{R+32+i}, v{R+32+i}, v{R+48+i}")
    for i in range(8): a(f"v_add_f32 v{R+i}, v{R+i}, v{R+32+i}")
    for j in range(4): a(f"v_permlane32_swap_b32 v{R+j}, v{R+4+j}")
    for i in range(8): a(f"v_add_f32 v{R+i}, v{R+i}, v{T+i}")
    for p in range(4): a(f"v_cvt_pk_bf16_f32 v{T+p}, v{R+2*p}, v{R+2*p+1}")
    a(f"buffer_store_dwordx4 {vr(T,4)}, v{vXO}, {sr(SDM,4)}, 0 offen")
    a("L_END:")
    stamp(a, 51)
    if PROF:
        a("s_waitcnt vmcnt(0)"); stamp(a, 52); stamp_rt(a, 63)
        a(f"s_lshl_b32 s3, s2, 3\ns_add_u32 s3, s3, s{sW}\ns_lshl_b32 s3, s3, 8\ns_add_u32 s3, s3, {WS_PROF}\nv_lshlrev_b32 v255, 2, v{vL}\nbuffer_store_dword v254, v255, {sr(SH,4)}, s3 offen")
    a("L_EXIT:\ns_endpgm")

    RETI = f"s_setpc_b64 s[{sRET}:{sRET+1}]"
    a.hist = []
    a("OST_LOAD:"); ost_load(); a(RETI)
    a.hist = []
    a("OST_COMP:"); ost_comp(); a(RETI)
    a.hist = []
    a("EPI_GELU:")
    for c, t in gelu_ops(): a(t)
    a(RETI)
    a.raw(".fill 1024, 4, 0xbf800000")
    return name

def main(out):
    a = Asm()
    a.raw('.amdgcn_target "amdgcn-amd-amdhsa--gfx950"\n.text')
    name = gen(a)
    txt = HDR + f"; @launch grid=(256,1,1) block=(512,1,1) lds={LDS}\n" + a.text()
    txt += f""".section .rodata,"a"
.p2align 6
.amdhsa_kernel {name}
  .amdhsa_next_free_vgpr 256
  .amdhsa_next_free_sgpr 102
  .amdhsa_accum_offset 256
  .amdhsa_group_segment_fixed_size 0
  .amdhsa_kernarg_size 88
  .amdhsa_user_sgpr_count 2
  .amdhsa_user_sgpr_kernarg_segment_ptr 1
  .amdhsa_system_sgpr_workgroup_id_x 1
.end_amdhsa_kernel
"""
    if PLAINST:
        txt = "\n".join(l.replace(" sc1", "") if "buffer_store_dwordx4" in l else l for l in txt.split("\n"))
    open(out, "w").write(txt)
    print("nops inserted:", a.nops, "lines:", txt.count("\n"))

if __name__ == "__main__":
    main(sys.argv[1] if len(sys.argv) > 1 and not sys.argv[1].startswith("--") else "cdna_kernels/%s.s" % NAME)
```

```python
import sys, math
from asmlib import *

NAME = "parallel_sum__linear_attn_block__mixer_channel_mlp__prompt"
HDR = open("cdna_kernels/%s.s.ref" % NAME).read().split("; Override launch geometry")[0]
PROF = "--prof" in sys.argv
FINE = "--fine" in sys.argv
P2ONLY = "--p2only" in sys.argv
NOSC1 = "--nosc1" in sys.argv
NOCHK = "--nochk" in sys.argv
LA = int(([x[5:] for x in sys.argv if x.startswith("--la=")] or ["8"])[0])
NOPRIO = "--noprio" in sys.argv
NOPOLL = "--nopoll" in sys.argv
NOATOM = "--noatom" in sys.argv
PLAINST = "--plainst" in sys.argv
PF = "--nopf" not in sys.argv
EPF = "--epf" in sys.argv
CPF = "--nocpf" not in sys.argv
L2W = "--l2w" in sys.argv
L2V = "--l2v" in sys.argv
L2H = "--nol2h" not in sys.argv

WS_KV = 0xA00000
WS_CNT = 0xA10000
WS_CNT2 = 0xA20000
WS_PART = 0xC00000
WS_SIZE = 0x1000000
WS_PROF = 0xB00000
UNIT = 28672
U = [0, UNIT, 2 * UNIT, 3 * UNIT, 4 * UNIT]
RING = [U[2], U[3], U[4], U[0], U[1]]
XB = 3 * UNIT
MISC = XB + 65536
BI = MISC
LCNT = 163840 - 64
SCR = [U[1], 5 * UNIT]
LDS = 163840
OOB_M0 = 0x38000
LOG2E = 1.4426950408889634
K0 = -2.0 * math.sqrt(2.0 / math.pi) * LOG2E
K1 = K0 * 0.044715
SPIN = 200000
M1, M2, MF_, MO, MH, MP = 0, 1, 2, 3, 4, 5
NKS = 144
W2U = 224 * 896

pX, pWQKV, pWO, pW1, pB1, pW2, pB2, pOUT, pDBG, pWS = 16, 18, 20, 24, 26, 28, 30, 32, 34, 36
SX, SW, SH, SD, SW2, SWO, SDM = 40, 44, 48, 52, 56, 60, 64
(sW, sRG, sG, sTYPE, sSTR, sT, sT2, sCH, sTT, sMASKHI, sONES, sK1, sHOFF, sTGB, sCHh, sKQ, sHEAD, sSPIN,
 sDO, sDSTEP, sTT2, sKH, sP2, sCT, sRT, sWL, sCB) = range(68, 95)
sRET = 96; sSEL = 98
sU = [4, 5, 6, 7, 8, 9, 10]
sMS = 11; sKC = 12; sPW = 13; sPUB = 14; sROT = 15; sHB = 95; sX0 = 100; sX1 = 101
sHK = 22
vHK = 123; vPF = 124
vL, vT0, vT1, vT2, vT3 = 1, 2, 3, 4, 5
vOX, vOW, vOW2, vXW, vAL, vA0, vA1, vL16, vK0, vBIA = 6, 7, 8, 9, 10, 11, 12, 13, 14, 15
vXR = [16, 17, 18, 19]
vMLO, vMV, vOV, vZ = 20, 21, 22, 23
ST = 24; PQ = 24
ACC = 32; BR = 48; AF = 64; TMP = 80; PK = 96; UR = 104
XR = 64
vFL = 120; vOWP1 = 121; vDM = 122
XF = 128
ACC2 = 24
ABL = [88, 96, 104, 112, 120, 224, 232, 240]; BB = 128; NB = 12
vB0, vB1, vBL0, vL16c, vXO, vOWP, vPL, vPK, vPO = 11, 12, 18, 9, 7, 6, 16, 17, 19
vOWQ = vOWP
sSL = [4, 5, 6, 7, 8, 9, 10, 99]
sWS = 98

def stamp(a, i, fine=False):
    if PROF and (FINE or not fine): a(f"s_memtime s[38:39]\ns_waitcnt lgkmcnt(0)\nv_writelane_b32 v254, s38, {i}")
def stamp_rt(a, i):
    if PROF: a(f"s_memrealtime s[38:39]\ns_waitcnt lgkmcnt(0)\nv_writelane_b32 v254, s38, {i}")
def srd(a, b, plo, size):
    a(f"s_mov_b64 s[{b}:{b+1}], s[{plo}:{plo+1}]\ns_mov_b32 s{b+2}, {size}\ns_mov_b32 s{b+3}, 0x20000")

class Cnt:
    def __init__(self, a, name, mx): self.a, self.name, self.mx, self.q = a, name, mx, []
    def add(self, tag, n=1): self.q += [tag] * n
    def wait(self, tag):
        idx = [i for i, t in enumerate(self.q) if t == tag]
        if not idx: return
        n = len(self.q) - 1 - idx[-1]
        self.a(f"s_waitcnt {self.name}({min(n, self.mx)})")
        self.q = self.q[idx[-1] + 1:]

def gen(a):
    name = NAME + "_kernel"
    a.raw(f".globl {name}\n.p2align 8\n.type {name},@function\n{name}:")
    MF = "v_mfma_f32_32x32x16_bf16"
    uid = [0]
    def L(p): uid[0] += 1; return f"L_{p}{uid[0]}"
    a("s_cmp_ge_u32 s2, 256\ns_cbranch_scc1 L_EXIT")
    if PROF: a("v_mov_b32 v254, 0")
    stamp(a, 0); stamp_rt(a, 62)
    a("s_load_dwordx16 s[16:31], s[0:1], 0\ns_load_dwordx4 s[32:35], s[0:1], 64\ns_load_dwordx2 s[36:37], s[0:1], 80")
    sWR = sHOFF
    a(f"""
    v_lshrrev_b32 v{vT0}, 6, v0
    v_and_b32 v{vL}, 63, v0
    v_readfirstlane_b32 s{sW}, v{vT0}
    s_and_b32 s{sT}, s2, 7
    s_lshr_b32 s{sT2}, s2, 3
    s_lshr_b32 s{sROT}, s{sT2}, 3
    s_lshr_b32 s{sRG}, s{sT}, 1
    s_lshl_b32 s{sRG}, s{sRG}, 2
    s_add_u32 s{sRG}, s{sRG}, s{sROT}
    s_and_b32 s{sT2}, s{sT2}, 7
    s_lshr_b32 s{sTYPE}, s{sT2}, 2
    s_and_b32 s{sG}, s{sT}, 1
    s_lshl_b32 s{sG}, s{sG}, 2
    s_and_b32 s3, s{sT2}, 3
    s_add_u32 s{sG}, s{sG}, s3
    s_lshl_b32 s{sRT}, s{sT}, 2
    s_add_u32 s{sRT}, s{sRT}, s{sROT}
    s_cmp_lg_u32 s{sT2}, 1
    s_cselect_b32 s{sP2}, 1, 0
    s_cmp_gt_u32 s{sT2}, 1
    s_cselect_b32 s3, 1, 0
    s_sub_u32 s{sCT}, s{sT2}, s3
    s_add_u32 s{sWR}, s{sW}, s{sT2}
    s_and_b32 s{sWR}, s{sWR}, 7
    s_lshr_b32 s{sCH}, s{sW}, 2
    s_and_b32 s{sTT}, s{sW}, 3
    v_lshrrev_b32 v{vT0}, 3, v{vL}
    v_and_b32 v{vT1}, 7, v{vL}
    v_mul_u32_u24 v{vOX}, 896, v{vT0}
    v_lshl_add_u32 v{vOX}, v{vT1}, 4, v{vOX}
    s_lshl_b32 s{sX0}, s{sRG}, 3
    s_add_u32 s{sX0}, s{sX0}, s{sWR}
    s_mul_i32 s{sX0}, s{sX0}, {16*896}
    s_add_u32 s{sX1}, s{sX0}, {8*896}
    v_lshlrev_b32 v{vL16}, 4, v{vL}
    v_mov_b32 v{vZ}, 0
    s_lshl_b32 s{sHEAD}, s{sG}, 1
    s_add_u32 s{sHEAD}, s{sHEAD}, s{sCH}
    s_mov_b32 s{SX+2}, {2048*896}
    s_mov_b32 s{SX+3}, 0x20000
    s_mov_b32 s{SH+2}, {WS_SIZE}
    s_mov_b32 s{SH+3}, 0x20000
    s_mov_b32 s{SDM+3}, 0x20000
    v_lshlrev_b32 v{vT2}, 7, v{vL}
    """)
    for i in range(4): a(f"v_mov_b32 v{ST+i}, 0")
    a(f"""
    s_waitcnt lgkmcnt(0)
    s_mov_b64 s[{SX}:{SX+1}], s[{pX}:{pX+1}]
    s_mov_b64 s[{SH}:{SH+1}], s[{pWS}:{pWS+1}]
    """)
    def xloads():
        for kb in range(7):
            for o in range(2):
                a(f"buffer_load_dwordx4 {vr(XR + (kb*2+o)*4, 4)}, v{vOX}, {sr(SX,4)}, s{sX0+o} offen offset:{kb*128}")
    def latepf(second):
        if not PF: return
        pa, pb, na, nb, za, zb = (pW2, pWO, 25, 7, 448*3584, 448*896) if second else (pW1, pWQKV, 25, 19, 448*3584, 448*2688)
        a(f"""
        s_cmp_lt_u32 s{sTT}, 2
        s_cselect_b64 s[{SDM}:{SDM+1}], s[{pa}:{pa+1}], s[{pb}:{pb+1}]
        s_cselect_b32 s{sT}, {na}, {nb}
        s_mov_b32 s{SDM+2}, {zb}
        s_cselect_b32 s{SDM+2}, {za}, s{SDM+2}
        s_and_b32 s3, s{sW}, 1
        s_lshl_b32 s{sSPIN}, s2, 1
        s_add_u32 s3, s3, s{sSPIN}
        s_mul_i32 s3, s3, s{sT}
        s_lshl_b32 s3, s3, 7
        v_lshlrev_b32 v{vT3}, 7, v{vL}
        s_bfm_b64 exec, s{sT}, 0
        buffer_load_dword v{vPF}, v{vT3}, {sr(SDM,4)}, s3 offen
        s_mov_b64 exec, -1
        """)
    a(f"s_setprio 3\ns_cmp_eq_u32 s{sCH}, 0\ns_cbranch_scc0 L_X1")
    xloads()
    a("s_setprio 0")
    a("s_branch L_X2\nL_X1:")
    if EPF:
        a(f"""
        s_cmp_gt_u32 s{sW}, 5
        s_cbranch_scc1 L_NPF
        s_cmp_eq_u32 s{sW}, 4
        s_cbranch_scc0 L_PFK
        s_mul_i32 s3, s2, 14
        v_add_u32 v{vT2}, s3, v{vL}
        v_lshrrev_b32 v{vT3}, 3, v{vT2}
        v_mul_u32_u24 v{vT3}, 3584, v{vT3}
        v_and_b32 v{vT2}, 7, v{vT2}
        v_lshl_add_u32 v{vT2}, v{vT2}, 7, v{vT3}
        s_mov_b64 exec, 0x3fff
        global_load_dword v{vFL}, v{vT2}, s[{pW1}:{pW1+1}]
        s_mov_b64 exec, -1
        s_branch L_NPF
L_PFK:
        s_mul_i32 s3, s2, 14
        v_add_u32 v{vT2}, s3, v{vL}
        v_lshrrev_b32 v{vT3}, 3, v{vT2}
        v_mul_u32_u24 v{vT3}, 2688, v{vT3}
        v_and_b32 v{vT2}, 7, v{vT2}
        v_lshl_add_u32 v{vT2}, v{vT2}, 7, v{vT3}
        s_mov_b64 exec, 0x3fff
        global_load_dword v{vFL}, v{vT2}, s[{pWQKV}:{pWQKV+1}] offset:896
        s_mov_b64 exec, -1
L_NPF:
        """)
    if CPF:
        a(f"""
        s_cmp_lg_u32 s{sW}, 6
        s_cbranch_scc1 L_NCP
        s_getpc_b64 s[{sRET}:{sRET+1}]
        s_lshr_b32 s3, s2, 3
        s_mul_i32 s3, s3, {7*128}
        v_add_u32 v{vT2}, s3, v{vT2}
        s_mov_b64 exec, 0x7f
        global_load_dword v{vFL}, v{vT2}, s[{sRET}:{sRET+1}]
        s_mov_b64 exec, -1
L_NCP:
        """)
    a(f"""
    s_cmp_eq_u32 s{sTYPE}, 0
    s_cbranch_scc0 L_ZM
    s_cmp_lg_u32 s{sRG}, 0
    s_cbranch_scc1 L_X2
    s_lshl_b32 s3, s{sG}, 13
    s_lshl_b32 s{sT}, s{sTT}, 11
    s_add_u32 s3, s3, s{sT}
    s_add_u32 s3, s3, {WS_KV}
    buffer_store_dwordx4 {vr(ST,4)}, v{vL16}, {sr(SH,4)}, s3 offen sc1
    buffer_store_dwordx4 {vr(ST,4)}, v{vL16}, {sr(SH,4)}, s3 offen offset:1024 sc1
    s_branch L_X2
L_ZM:
    s_mov_b64 s[{SDM}:{SDM+1}], s[{pB1}:{pB1+1}]
    s_mov_b32 s{SDM+2}, {1792*2}
    s_lshl_b32 s3, s{sTT}, 10
    buffer_load_dwordx4 {vr(BR,4)}, v{vL16}, {sr(SDM,4)}, s3 offen
    s_or_b32 s3, s{sG}, s{sTT}
    s_cmp_lg_u32 s3, 0
    s_cbranch_scc1 L_X2
    s_lshl_b32 s3, s{sRG}, 11
    s_add_u32 s3, s3, {WS_CNT2}
    buffer_store_dwordx4 {vr(ST,4)}, v{vL16}, {sr(SH,4)}, s3 offen sc1
    buffer_store_dwordx4 {vr(ST,4)}, v{vL16}, {sr(SH,4)}, s3 offen offset:1024 sc1
L_X2:
    """)
    srd(a, SD, pDBG, 256); srd(a, SW2, pW2, 1792 * 896); srd(a, SWO, pWO, 448 * 896)
    a(f"""
    s_add_u32 s{sWL}, s{sTT}, s{sROT}
    s_and_b32 s{sWL}, s{sWL}, 3
    s_cmp_eq_u32 s{sTYPE}, 0
    s_cselect_b64 s[{SW}:{SW+1}], s[{pWQKV}:{pWQKV+1}], s[{pW1}:{pW1+1}]
    s_mov_b32 s{SW+3}, 0x20000
    s_mov_b32 s{sSTR}, 3584
    s_cselect_b32 s{sSTR}, 2688, s{sSTR}
    s_mul_i32 s{SW+2}, s{sSTR}, 448
    s_cselect_b64 s[{sSEL}:{sSEL+1}], 0, -1
    s_mul_i32 s{sT}, s{sWL}, s{sSTR}
    s_cbranch_scc0 L_PM
    s_lshl_b32 s{sT}, s{sT}, 3
    s_mul_i32 s3, s{sG}, 112
    s_add_u32 s{sT}, s{sT}, s3
    s_add_u32 s{sU[0]}, s{sT}, 896
    s_add_u32 s{sU[1]}, s{sT}, {896 + 224*2688}
    s_add_u32 s{sU[2]}, s{sT}, 1792
    s_add_u32 s{sU[3]}, s{sT}, {1792 + 224*2688}
    s_mov_b32 s{sU[4]}, s{sT}
    s_add_u32 s{sU[5]}, s{sT}, {224*2688}
    s_mul_i32 s{sT2}, s{sCH}, 56
    s_branch L_PJ
L_PM:
    s_lshl_b32 s{sT}, s{sT}, 3
    s_lshl_b32 s{sCHh}, s{sG}, 6
    s_add_u32 s{sCHh}, s{sCHh}, 1024
    s_lshl_b32 s3, s{sG}, 7
    s_add_u32 s{sU[0]}, s{sT}, s3
    s_add_u32 s{sU[1]}, s{sU[0]}, {224*3584}
    s_add_u32 s{sU[2]}, s{sT}, s{sCHh}
    s_add_u32 s{sU[3]}, s{sU[0]}, 1536
    s_add_u32 s{sU[4]}, s{sU[0]}, {1536 + 224*3584}
    s_add_u32 s{sU[5]}, s{sU[0]}, 2560
    s_add_u32 s{sU[6]}, s{sU[0]}, {2560 + 224*3584}
    s_lshl_b32 s{sT2}, s{sCH}, 6
    s_add_u32 s{sCB}, s{sT2}, s3
L_PJ:
    s_lshl_b32 s{sDSTEP}, s{sSTR}, 5
    v_lshrrev_b32 v{vT2}, 2, v{vL}
    v_and_b32 v{vT2}, 4, v{vT2}
    v_xor_b32 v{vT2}, v{vT2}, v{vT1}
    v_mul_lo_u32 v{vT3}, v{vT0}, s{sSTR}
    v_lshl_add_u32 v{vOW}, v{vT2}, 4, v{vT3}
    v_mul_u32_u24 v{vOWP1}, 896, v{vT0}
    v_lshl_add_u32 v{vOWP1}, v{vT2}, 4, v{vOWP1}
    s_lshl_b32 s3, s{sCT}, 7
    v_add_u32 v{vOWP1}, s3, v{vOWP1}
    v_and_b32 v{vOW2}, 3, v{vT2}
    v_lshl_add_u32 v{vOW2}, v{vOW2}, 4, v{vT3}
    v_lshrrev_b32 v{vT2}, 2, v{vT2}
    s_mov_b32 s3, {224*3584}
    v_mul_lo_u32 v{vT2}, v{vT2}, s3
    v_add_u32 v{vOW2}, v{vOW2}, v{vT2}
    v_xor_b32 v{vT2}, v{vT0}, v{vT1}
    v_lshlrev_b32 v{vT2}, 4, v{vT2}
    v_lshl_add_u32 v{vXW}, v{vT1}, 9, v{vT2}
    s_lshr_b32 s3, s{sWR}, 1
    s_lshl_b32 s3, s3, 14
    s_and_b32 s{sT}, s{sWR}, 1
    s_lshl_b32 s{sT}, s{sT}, 8
    s_add_u32 s3, s3, s{sT}
    s_add_u32 s3, s3, {XB}
    v_add_u32 v{vXW}, s3, v{vXW}
    v_lshrrev_b32 v{vT2}, 5, v{vL}
    v_and_b32 v{vT3}, 31, v{vL}
    v_xor_b32 v{vT3}, v{vT3}, v{vT2}
    v_lshlrev_b32 v{vT3}, 4, v{vT3}
    v_lshl_add_u32 v{vT3}, v{vT2}, 9, v{vT3}
    s_lshl_b32 s3, s{sTT}, 14
    s_add_u32 s3, s3, {XB}
    """)
    for j in range(4):
        a(f"v_xor_b32 v{vXR[j]}, {32*j}, v{vT3}\nv_add_u32 v{vXR[j]}, s3, v{vXR[j]}")
    a(f"""
    v_and_b32 v{vT0}, 3, v{vL}
    v_lshlrev_b32 v{vT0}, 3, v{vT0}
    v_and_b32 v{vT1}, 16, v{vL}
    v_lshl_add_u32 v{vT0}, v{vT1}, 1, v{vT0}
    v_add_u32 v{vT0}, s{sT2}, v{vT0}
    v_and_b32 v{vT1}, 8, v{vL}
    v_lshlrev_b32 v{vT1}, 3, v{vT1}
    v_xor_b32 v{vT0}, v{vT0}, v{vT1}
    v_and_b32 v{vT1}, 12, v{vL}
    v_lshl_add_u32 v{vT0}, v{vT1}, 5, v{vT0}
    v_lshl_add_u32 v{vAL}, v{vT2}, 10, v{vT0}
    s_mov_b32 s{sMASKHI}, 0xffff0000
    s_mov_b32 s{sONES}, 0x3f803f80
    s_mov_b32 s{sK1}, {f32(K1)}
    v_mov_b32 v{vK0}, {f32(K0)}
    v_lshlrev_b32 v{vBIA}, 4, v{vT2}
    v_add_u32 v{vBIA}, {BI}, v{vBIA}
    s_lshl_b32 s{sTGB}, s{sRG}, 2
    s_add_u32 s{sTGB}, s{sTGB}, s{sTT}
    s_lshl_b32 s{sMS}, s{sRG}, 1
    s_add_u32 s{sMS}, s{sMS}, s{sTYPE}
    s_lshl_b32 s{sMS}, s{sMS}, 3
    s_add_u32 s{sMS}, s{sMS}, s{sG}
    s_lshl_b32 s{sMS}, s{sMS}, 7
    s_add_u32 s{sMS}, s{sMS}, {WS_CNT2}
    s_mul_i32 s{sTGB}, s{sTGB}, {NKS*1024}
    s_lshl_b32 s{sWL}, s{sWL}, 10
    s_mov_b32 m0, s{sWL}
    s_add_u32 s{sKQ}, s{sW}, s{sCT}
    s_and_b32 s{sKQ}, s{sKQ}, 7
    s_lshr_b32 s{sPW}, s{sRT}, 1
    s_lshl_b32 s{sPW}, s{sPW}, 11
    s_add_u32 s{sPW}, s{sPW}, {WS_CNT2}
    s_mul_i32 s{sHB}, s{sRT}, {2*NKS}
    s_add_u32 s{sHB}, s{sHB}, s{sKQ}
    s_lshl_b32 s{sHB}, s{sHB}, 10
    s_lshl_b32 s{sKC}, s{sG}, 7
    s_add_u32 s{sKC}, s{sKC}, {WS_CNT2}
    v_add_u32 v{vA0}, {U[0]}, v{vAL}
    v_add_u32 v{vA1}, {U[1]}, v{vAL}
    """)
    if P2ONLY: a("s_branch L_DBG")
    a(f"s_cmp_eq_u32 s{sCH}, 0\ns_cbranch_scc1 L_X3")
    xloads()
    a("s_setprio 1\nL_X3:")
    stamp(a, 1)
    for kb in range(7):
        a(f"s_waitcnt vmcnt({12 - 2*kb})")
        for d in range(4):
            for o in range(2):
                r = XR + (kb*2+o)*4 + d
                a(f"v_dot2c_f32_bf16 v{ST+o}, s{sONES}, v{r}\nv_dot2c_f32_bf16 v{ST+2+o}, v{r}, v{r}")
    stamp(a, 2)
    a(f"v_mov_b32 v{vOWP}, v{vOWP1}")
    for pat in ("quad_perm:[1,0,3,2]", "quad_perm:[2,3,0,1]", "row_half_mirror"):
        for i in range(4):
            a(f"v_add_f32_dpp v{ST+i}, v{ST+i}, v{ST+i} {pat} row_mask:0xf bank_mask:0xf")
    inv = f32(1.0 / 448.0); eps = f32(1e-5)
    for o in range(2): a(f"v_mul_f32 v{ST+o}, {inv}, v{ST+o}")
    for o in range(2): a(f"v_mul_f32 v{ST+2+o}, {inv}, v{ST+2+o}")
    for o in range(2): a(f"v_fma_f32 v{ST+2+o}, -v{ST+o}, v{ST+o}, v{ST+2+o}")
    for o in range(2): a(f"v_max_f32 v{ST+2+o}, 0, v{ST+2+o}")
    for o in range(2): a(f"v_add_f32 v{ST+4+o}, {eps}, v{ST+2+o}")
    for o in range(2): a(f"v_rsq_f32 v{ST+4+o}, v{ST+4+o}")
    for o in range(2): a(f"v_mul_f32 v{ST+2+o}, v{ST+2+o}, v{ST+4+o}")
    for o in range(2): a(f"v_mul_f32 v{ST+2+o}, v{ST+2+o}, v{ST+4+o}")
    for o in range(2): a(f"v_add_f32 v{ST+2+o}, {eps}, v{ST+2+o}")
    for o in range(2): a(f"v_rsq_f32 v{ST+2+o}, v{ST+2+o}")
    for o in range(2): a(f"v_cndmask_b32 v{ST+2+o}, 1.0, v{ST+2+o}, s[{sSEL}:{sSEL+1}]")
    a(f"v_mul_f32 v{ST+6}, v{ST+5}, v{ST+3}\nv_mul_f32 v{ST+4}, v{ST+4}, v{ST+2}")
    a(f"v_mul_f32 v{ST+5}, -v{ST}, v{ST+4}\nv_mul_f32 v{ST+7}, -v{ST+1}, v{ST+6}")
    NT = ACC
    def xw(kb, o, lk=None):
        a(f"ds_write_b128 v{vXW}, {vr(XR + (kb*2+o)*4, 4)} offset:{(kb%4)*4096 + o*128}")
        if lk: lk.add("w")
    def norm(kb):
        for o in range(2):
            t = NT + 8 * o
            r = XR + (kb*2+o)*4
            P = vr(ST+4+2*o, 2)
            for d in range(4): a(f"v_lshlrev_b32 v{t+2*d}, 16, v{r+d}\nv_and_b32 v{t+2*d+1}, s{sMASKHI}, v{r+d}")
            for d in range(4): a(f"v_pk_fma_f32 {vr(t+2*d,2)}, {vr(t+2*d,2)}, {P}, {P} op_sel:[0,0,1] op_sel_hi:[1,0,1]")
            for d in range(4): a(f"v_cvt_pk_bf16_f32 v{r+d}, v{t+2*d}, v{t+2*d+1}")
            if kb < 4: xw(kb, o)
    def xr(s, lk=None):
        a(f"ds_read_b128 {vr(XF + 4*s, 4)}, v{vXR[s%4]} offset:{(s%16)*1024}")
        if lk: lk.add(("x", s))
    def dmas(n, S, vo, src, step, lstep=4096):
        for i in range(n):
            a(f"buffer_load_dwordx4 v{vo}, {sr(S,4)}, s{src} offen lds\ns_add_u32 s{src}, s{src}, {step}\ns_add_u32 m0, m0, {lstep}")
    def burst(S, vo, slot, src, step):
        a(f"s_add_u32 m0, s{sWL}, {slot}"); dmas(7, S, vo, src, step)
    def only_ch(ch, f):
        l = L("C"); a(f"s_cmp_eq_u32 s{sCH}, {ch}\ns_cbranch_scc0 {l}"); f(); a(f"{l}:")
    ST_ = f"s{sDSTEP}"
    norm(0); norm(1)
    only_ch(0, lambda: (latepf(0), dmas(7, SW, vOW, sU[0], ST_)))
    norm(2); norm(3)
    only_ch(0, lambda: burst(SW, vOW, U[1], sU[1], ST_))
    def b_misc():
        lb = L("NB")
        a(f"s_cmp_eq_u32 s{sTYPE}, 0\ns_cbranch_scc1 {lb}")
        for d in range(4): a(f"v_lshlrev_b32 v{NT+2*d}, 16, v{BR+d}\nv_and_b32 v{NT+2*d+1}, s{sMASKHI}, v{BR+d}")
        a(f"s_lshl_b32 s3, s{sTT}, 11\ns_add_u32 s3, s3, {BI}\nv_lshlrev_b32 v{vT0}, 5, v{vL}\nv_add_u32 v{vT0}, s3, v{vT0}")
        a(f"ds_write_b128 v{vT0}, {vr(NT,4)}\nds_write_b128 v{vT0}, {vr(NT+4,4)} offset:16\n{lb}:")
        a(f"v_mov_b32 v{vT0}, {LCNT}\nv_mov_b32 v{vT2}, 0\nv_mov_b32 v{vT3}, 0\nds_write_b64 v{vT0}, v[{vT2}:{vT3}]\nds_write_b64 v{vT0}, v[{vT2}:{vT3}] offset:8\nds_write_b64 v{vT0}, v[{vT2}:{vT3}] offset:16\ns_setprio 0")
    only_ch(1, b_misc)
    stamp(a, 3)

    def setA(lo, hi, xor=False):
        a(f"v_add_u32 v{vA0}, {lo}, v{vAL}")
        if xor: a(f"v_xor_b32 v{vA1}, 64, v{vA0}")
        else: a(f"v_add_u32 v{vA1}, {hi}, v{vAL}")
    sc = [4]
    def call(l):
        a(f"s_call_b64 s[{sRET}:{sRET+1}], {l}")
        stamp(a, sc[0], True); sc[0] += 1
    def bar(fine=False):
        a("s_barrier"); stamp(a, sc[0], fine); sc[0] += 1
    def bias(cb_sgpr, add, lk=None):
        a(f"s_lshl_b32 s3, s{cb_sgpr}, 1\nv_add_u32 v{vT0}, s3, v{vBIA}")
        for i in range(4): a(f"ds_read_b128 {vr(BR+4*i,4)}, v{vT0} offset:{2*add + 32*i}")
        if lk: lk.add("b", 4)
    def hoff(cb_sgpr, add):
        a(f"s_lshl_b32 s3, s{cb_sgpr}, 5\ns_add_u32 s3, s3, {32*add}\ns_add_u32 s{sHOFF}, s3, s{sTGB}")
    def trd(s, lk=None):
        va = vA0 if s < 14 else vA1
        b = AF + 4 * (s % 4)
        a(f"ds_read_b64_tr_b16 {vr(b,2)}, v{va} offset:{(s%14)*2048}\nds_read_b64_tr_b16 {vr(b+2,2)}, v{va} offset:{(s%14)*2048+512}")
        if lk: lk.add(("t", s), 2)
    def mf(s, orient, czero=False):
        A, B = vr(AF + 4*(s%4), 4), vr(XF + 4*s, 4)
        if orient == "N": A, B = B, A
        C = ("0" if czero else vr(BR, 16)) if s == 0 else vr(ACC, 16)
        a(f"{MF} {vr(UR if s == 27 else ACC,16)}, {A}, {B}, {C}")
    def setD(S, vo, step, slotA, srcA, slotB, srcB, vo2=None):
        a(f"s_mov_b64 s[{SDM}:{SDM+1}], s[{S}:{S+1}]\ns_mov_b32 s{SDM+2}, s{S+2}\ns_mov_b32 s{sDSTEP}, {step}")
        a(f"s_mov_b32 s3, {slotB}\ns_mov_b32 s{sDO}, {srcB}\ns_cmp_eq_u32 s{sCH}, 0\ns_cselect_b32 s3, {slotA}, s3\ns_cselect_b32 s{sDO}, {srcA}, s{sDO}")
        if vo2 is None: a(f"v_mov_b32 v{vDM}, v{vo}")
        else: a(f"s_cselect_b64 vcc, -1, 0\nv_cndmask_b32 v{vDM}, v{vo2}, v{vo}, vcc")
        a(f"s_add_u32 m0, s{sWL}, s3")
    DLD = f"buffer_load_dwordx4 v{vDM}, {sr(SDM,4)}, s{sDO} offen lds"
    DUP = f"s_add_u32 m0, m0, 4096\ns_add_u32 s{sDO}, s{sDO}, s{sDSTEP}"
    def flags_load():
        a(f"v_lshlrev_b32 v{vT1}, 2, v{vL}\nbuffer_load_dword v{vFL}, v{vT1}, {sr(SD,4)}, 0 offen sc1")
    def flags_check():
        lc, ld = L("FC"), L("FD")
        a(f"""
        s_mov_b32 s{sSPIN}, 0
{lc}:
        v_cmp_ne_u32 vcc, 0, v{vFL}
        s_and_b32 s3, vcc_lo, 0xffff00ff
        s_cmp_eq_u32 s3, 0xffff00ff
        s_cbranch_scc1 {ld}
        s_add_u32 s{sSPIN}, s{sSPIN}, 1
        s_cmp_gt_u32 s{sSPIN}, {SPIN}
        s_cbranch_scc1 {ld}
        """)
        flags_load()
        a(f"s_waitcnt vmcnt(0)\ns_branch {lc}\n{ld}:")
    def flag_store(word):
        a(f"v_mov_b32 v{vT2}, 1\ns_mov_b64 exec, 1\nbuffer_store_dword v{vT2}, v{vZ}, {sr(SH,4)}, s{sMS} offen offset:{4*word} sc1\ns_mov_b64 exec, -1")
    def signal(m):
        if NOATOM: return
        l = L("SG")
        a(f"""
        v_mov_b32 v{vT1}, {LCNT + 4*m}
        v_mov_b32 v{vT2}, 1
        s_mov_b64 exec, 1
        ds_add_rtn_u32 v{vT3}, v{vT1}, v{vT2}
        s_mov_b64 exec, -1
        s_waitcnt lgkmcnt(0)
        v_readfirstlane_b32 s3, v{vT3}
        s_cmp_lg_u32 s3, {3 if m == MH else 7}
        s_cbranch_scc1 {l}
        """)
        if m == MP: a(f"s_lshl_b32 s{sMS}, s{sCT}, 7\ns_add_u32 s{sMS}, s{sMS}, s{sPW}")
        flag_store({M1: 0, M2: 1, MF_: 2, MO: 1, MH: 3, MP: 2}[m])
        a(f"{l}:")
    PQ4 = 248
    PINFO = {M1: (PQ4, 0xff00), M2: (PQ4 + 1, 0xff00), MF_: (PQ4 + 2, 0xff00), MH: (PQ4 + 3, 0xff00), MO: (PQ4 + 1, 0xff), MP: (PQ4 + 2, 0xff), "K": (vPK, 0xffff)}
    def poll_issue(m):
        vreg, ex = PINFO[m]
        if m == "K": a(f"v_lshlrev_b32 v{vT0}, 11, v{vL}\ns_mov_b64 exec, {ex}\nbuffer_load_dword v{vPK}, v{vT0}, {sr(SH,4)}, s{sKC} offen sc1\ns_mov_b64 exec, -1")
        else: a(f"s_mov_b64 exec, {ex}\nbuffer_load_dwordx4 {vr(PQ4,4)}, v{vPO}, {sr(SH,4)}, s{sPW} offen sc1\ns_mov_b64 exec, -1")
    def poll_check(m):
        if P2ONLY or NOCHK: return
        vreg, ex = PINFO[m]
        if m == MP: a(f"s_lshl_b32 s{sT}, 1, s{sCT}"); ex = f"s{sT}"
        lc, ld = L("PC"), L("PD")
        a(f"""
        s_mov_b32 s{sSPIN}, 0
{lc}:
        v_cmp_eq_u32 vcc, 1, v{vreg}
        s_and_b32 s3, vcc_lo, {ex}
        s_cmp_eq_u32 s3, {ex}
        s_cbranch_scc1 {ld}
        s_add_u32 s{sSPIN}, s{sSPIN}, 1
        s_cmp_gt_u32 s{sSPIN}, {SPIN}
        s_cbranch_scc1 {ld}
        s_sleep 4
        """)
        poll_issue(m)
        a(f"s_waitcnt vmcnt(0)\ns_branch {lc}\n{ld}:")
    def gelu_ops():
        ops = []
        ops += [(1, f"v_mul_f32 v{TMP+i}, v{UR+i}, v{UR+i}") for i in range(16)]
        ops += [(1, f"v_fma_f32 v{TMP+i}, v{TMP+i}, s{sK1}, v{vK0}") for i in range(16)]
        ops += [(1, f"v_mul_f32 v{TMP+i}, v{TMP+i}, v{UR+i}") for i in range(16)]
        ops += [(2, f"v_exp_f32 v{TMP+i}, v{TMP+i}") for i in range(16)]
        ops += [(1, f"v_add_f32 v{TMP+i}, 1.0, v{TMP+i}") for i in range(16)]
        ops += [(2, f"v_rcp_f32 v{TMP+i}, v{TMP+i}") for i in range(16)]
        ops += [(1, f"v_mul_f32 v{TMP+i}, v{TMP+i}, v{UR+i}") for i in range(16)]
        ops += [(1, f"v_cvt_pk_bf16_f32 v{PK+p}, v{TMP+2*p}, v{TMP+2*p+1}") for p in range(8)]
        ops += [(1, f"buffer_store_dwordx4 {vr(PK,4)}, v{vL16}, {sr(SH,4)}, s{sHOFF} offen sc1")]
        ops += [(1, f"buffer_store_dwordx4 {vr(PK+4,4)}, v{vL16}, {sr(SH,4)}, s{sHOFF} offen offset:1024 sc1")]
        return ops
    def phi_ops(dst):
        ops = [(1, f"v_mul_f32 v{TMP+i}, s{sK1}, v{UR+i}") for i in range(16)]
        ops += [(2, f"v_exp_f32 v{TMP+i}, v{TMP+i} clamp") for i in range(16)]
        ops += [(1, f"v_max_f32 v{UR+i}, s{sHOFF}, v{UR+i}") for i in range(16)]
        ops += [(1, f"v_add_f32 v{TMP+i}, v{TMP+i}, v{UR+i}") for i in range(16)]
        ops += [(1, f"v_cvt_pk_bf16_f32 v{dst+p}, v{TMP+2*p}, v{TMP+2*p+1}") for p in range(8)]
        return ops
    def round_(orient, ops, extra, czero, vmc=None, vb=(6, 13, 20)):
        ops = list(ops)
        for s in range(3): trd(s)
        tot = sum(c for c, _ in ops); done = [0]; head = tot // (len(vb) + 1)
        def emit_until(x):
            while ops and done[0] + ops[0][0] <= x:
                c, t = ops.pop(0); a(t); done[0] += c
                if vmc is not None and t.startswith("buffer"): vmc.add("S")
        emit_until(head)
        if tot: a("s_setprio 1")
        for s in range(28):
            if s + 3 < 28: trd(s + 3)
            a(f"s_waitcnt lgkmcnt({2*min(3, 27-s)})")
            mf(s, orient, czero=czero)
            if s in extra: extra[s]()
            if (s in vb and tot) or ('v', s) in extra:
                if tot: a("s_setprio 0")
                emit_until(head + (tot - head) * (s + 1) / (vb[-1] + 1.0) + 0.01)
                if ('v', s) in extra: extra[('v', s)]()
                if tot: a("s_setprio 1")
        assert not ops
        if tot: a("s_setprio 0")
        stamp(a, sc[0], True); sc[0] += 1
    def dstream(every, n=7, vmc=None, tag="D"):
        ex = {}
        for i in range(n):
            def f():
                a(DLD)
                if vmc is not None: vmc.add(tag)
            ex[i * every] = f
            if i < n - 1: ex[i * every + 1] = lambda: a(DUP)
        return ex
    def p2_setup(slots):
        a(f"s_lshl_b32 s3, s{sKQ}, 11")
        for j in range(8): a(f"s_add_u32 s{sSL[j]}, s3, {slots[j]}")
        a(f"s_mov_b32 s{sHK}, {slots[0]}")
        for j in range(1, 8): a(f"s_cmp_eq_u32 s{sKQ}, {j}\ns_cselect_b32 s{sHK}, {slots[j]}, s{sHK}")
        a(f"""
        s_mul_i32 s{sWS}, s{sKQ}, {16*896}
        s_lshr_b32 s3, s{sKQ}, 1
        s_mul_i32 s{sKH}, s3, {28*896}
        s_and_b32 s3, s{sKQ}, 1
        s_mul_i32 s3, s3, {16*896}
        s_add_u32 s{sKH}, s{sKH}, s3
        v_lshlrev_b32 v{vPO}, 7, v{vL}
        v_and_b32 v{vT0}, 3, v{vL}
        v_lshlrev_b32 v{vT0}, 3, v{vT0}
        v_and_b32 v{vT1}, 16, v{vL}
        v_lshl_add_u32 v{vT0}, v{vT1}, 1, v{vT0}
        v_and_b32 v{vT1}, 8, v{vL}
        v_lshl_add_u32 v{vT0}, v{vT1}, 3, v{vT0}
        v_and_b32 v{vT1}, 12, v{vL}
        v_lshl_add_u32 v{vT0}, v{vT1}, 5, v{vT0}
        v_lshrrev_b32 v{vT2}, 5, v{vL}
        v_lshl_add_u32 v{vBL0}, v{vT2}, 9, v{vT0}
        v_add_u32 v{vL16c}, {NKS*1024}, v{vL16}
        """)
    def Whalf(j, c):
        S, base, imm = (SW2, sWS, j * 8 * 16 * 896) if j < 14 else (SWO, sKH, (j - 14) * 112 * 896)
        a(f"s_add_u32 m0, s{sSL[j%8]}, {1024*c}\ns_add_u32 s3, s{base}, {imm + c*8*896}\nbuffer_load_dwordx4 v{vOWQ}, {sr(S,4)}, s3 offen lds")
    def Hhalf(j, t):
        b = BB + (j % NB) * 8 + 4 * t
        a(f"s_add_u32 s3, s{sHB}, {j*8192}\nbuffer_load_dwordx4 {vr(b,4)}, v{vL16c if t else vL16}, {sr(SH,4)}, s3 offen sc1")
    def zflag_pub(cond_a, cond_b, idx, off):
        l = L("ZF")
        a(f"s_xor_b32 s3, s{sW}, 4\ns_or_b32 s3, s3, s{cond_a}\ns_cmp_lg_u32 s3, 0\ns_cbranch_scc1 {l}\nv_mov_b32 v{vT2}, 1\ns_lshl_b32 s3, s{idx}, 2")
        a(f"buffer_store_dword v{vT2}, v{vZ}, {sr(SD,4)}, s3 offen offset:{off} sc1\n{l}:")
    def midx(dst):
        a(f"s_lshl_b32 s{dst}, s{sROT}, 2\ns_and_b32 s3, s{sG}, 3\ns_add_u32 s{dst}, s{dst}, s3\ns_lshl_b32 s{dst}, s{dst}, 3\ns_add_u32 s{dst}, s{dst}, s{sW}")
    def pf_lin(S, n, base):
        midx(sT)
        a(f"s_mul_i32 s{sT}, s{sT}, {n*128}\ns_add_u32 s{sT}, s{sT}, {base}\nv_lshlrev_b32 v{vT1}, 7, v{vL}\ns_bfm_b64 exec, {n}, 0")
        a(f"buffer_load_dword v{vPF}, v{vT1}, {sr(S,4)}, s{sT} offen\ns_mov_b64 exec, -1")
    def pf_w2(i):
        if not L2W: return
        a(f"""
        s_lshl_b32 s{sT}, s{sROT}, 2
        s_and_b32 s3, s{sG}, 3
        s_add_u32 s{sT}, s{sT}, s3
        s_lshl_b32 s{sT}, s{sT}, 2
        s_add_u32 s{sT}, s{sT}, s{sTT}
        s_add_u32 s3, s2, {i}
        s_and_b32 s3, s3, 3
        s_cmp_eq_u32 s3, 3
        s_cselect_b64 s[{SDM}:{SDM+1}], s[{SWO}:{SWO+1}], s[{SW2}:{SW2+1}]
        s_cselect_b32 s{SDM+2}, s{SWO+2}, s{SW2+2}
        s_cselect_b32 s{sT2}, 49, 61
        s_cselect_b32 s{sSPIN}, 0, {128*7}
        s_cselect_b32 s3, 0, s3
        s_lshl_b32 s3, s3, 6
        s_add_u32 s{sT}, s{sT}, s3
        s_mul_i32 s{sT}, s{sT}, s{sT2}
        s_add_u32 s{sT}, s{sT}, s{sSPIN}
        s_lshl_b32 s{sT}, s{sT}, 7
        s_bfm_b64 exec, s{sT2}, 0
        buffer_load_dword v{vPF}, v{vPO}, {sr(SDM,4)}, s{sT} offen
        s_mov_b64 exec, -1
        """)
    def pf_vq():
        midx(sT)
        a(f"""
        s_mul_i32 s{sT}, s{sT}, 28
        v_add_u32 v{vT1}, s{sT}, v{vL}
        v_lshrrev_b32 v{vT2}, 3, v{vT1}
        v_mul_u32_u24 v{vT2}, 2688, v{vT2}
        v_and_b32 v{vT3}, 3, v{vT1}
        v_lshl_add_u32 v{vT2}, v{vT3}, 7, v{vT2}
        v_bfe_u32 v{vT3}, v{vT1}, 2, 1
        v_mul_u32_u24 v{vT3}, 1792, v{vT3}
        v_add_u32 v{vT2}, v{vT2}, v{vT3}
        s_lshr_b32 s3, s{sG}, 2
        s_mul_i32 s3, s3, 384
        v_add_u32 v{vT2}, s3, v{vT2}
        s_bfm_b64 exec, 28, 0
        global_load_dword v{vPF}, v{vT2}, s[{pWQKV}:{pWQKV+1}]
        s_mov_b64 exec, -1
        """)
    def gemm_first(orient):
        T = orient == "T"
        lk = Cnt(a, "lgkmcnt", 15)
        if T: bias(sCB, 0, lk)
        xr(0, lk); trd(0, lk); xr(1, lk); trd(1, lk); xr(2, lk); trd(2, lk); xr(3, lk)
        a(f"s_mul_i32 s3, s{sCH}, s{sDSTEP}\ns_lshl_b32 s3, s3, 2\ns_add_u32 s{sU[2]}, s{sU[2]}, s3\ns_lshl_b32 s3, s{sCH}, 14\ns_add_u32 s3, s3, {U[2]}\ns_add_u32 m0, s{sWL}, s3")
        if T: zflag_pub(sG, 0, sRG, 64)
        else: zflag_pub(sRG, 0, sG, 0)
        nops = []
        for q, (kb, o) in enumerate([(kb, o) for kb in range(4, 7) for o in range(2)]):
            t = TMP + 8 * (q % 2); r = XR + (kb*2+o)*4
            for d in range(4): nops += [f"v_lshlrev_b32 v{t+2*d}, 16, v{r+d}", f"v_and_b32 v{t+2*d+1}, s{sMASKHI}, v{r+d}"]
            for d in range(8): nops.append(f"v_fma_f32 v{t+d}, v{t+d}, v{ST+4+2*o}, v{ST+5+2*o}")
            for d in range(4): nops.append(f"v_cvt_pk_bf16_f32 v{r+d}, v{t+2*d}, v{t+2*d+1}")
            nops.append(("w", kb, o))
        pend = []
        def nrm(n, canw):
            for _ in range(n):
                if not nops: break
                x = nops.pop(0)
                if isinstance(x, tuple): pend.append(x)
                else: a(x)
            if canw:
                while pend:
                    _, kb, o = pend.pop(0); xw(kb, o, lk)
        nrm(12, False)
        S3 = 14
        for s in range(28):
            if s == 5:
                lk.wait(("x", 15)); bar(True)
            if s == 11:
                pass
            if s == S3:
                assert not nops and not pend
                lk.wait("w"); a("s_waitcnt vmcnt(4)"); bar(True)
                for z in (14, 15, 16): trd(z, lk)
                for x in range(16, 22): xr(x, lk)
            if s == 16:
                for x in range(22, 28): xr(x, lk)
            if s == 19:
                lk.wait(("x", 27)); bar(True)
                if T: setD(SW, vOW, 32 * 3584, U[3], f"s{sU[3]}", U[4], f"s{sU[4]}")
                else:
                    a(f"s_mul_i32 s3, s{sCH}, {4*32*2688}\ns_add_u32 s{sU[3]}, s{sU[3]}, s3\ns_lshl_b32 s3, s{sCH}, 14\ns_add_u32 s3, s3, {U[3]}\ns_add_u32 m0, s{sWL}, s3")
            if s + 3 < 28 and not (s < S3 and s + 3 >= 14): trd(s + 3, lk)
            if s < 4:
                for x in range(4 + 3*s, 7 + 3*s): xr(x, lk)
            lk.wait(("t", s)); lk.wait(("x", s))
            mf(s, orient, czero=not T)
            if s < S3: nrm(9, s >= 5)
            if s in (1, 3, 6): dmas(1, SW, vOW2 if T else vOW, sU[2], ST_)
            if s == 8: only_ch(0, lambda: dmas(1, SW, vOW2 if T else vOW, sU[2], ST_))
            if s >= 20:
                if T and s < 27: a(DLD + "\n" + DUP)
                if not T and s in (20, 22, 24): dmas(1, SW, vOW, sU[3], 32 * 2688)
                if not T and s == 26: only_ch(0, lambda: dmas(1, SW, vOW, sU[3], 32 * 2688))
        stamp(a, sc[0], True); sc[0] += 1

    a("s_waitcnt vmcnt(7) lgkmcnt(0)"); bar()
    a(f"s_cmp_eq_u32 s{sTYPE}, 0\ns_cbranch_scc1 L_ATT")
    gemm_first("T")
    flags_load()
    hoff(sCB, 0)
    setD(SW, vOW, 32 * 3584, U[0], f"s{sU[5]}", U[1], f"s{sU[6]}")
    SL_M = [U[2]] + [XB + 16384*i for i in range(4)] + [16384*i for i in range(3)]
    p2_setup(SL_M)
    a(f"s_cmp_eq_u32 s{sCH}, 0\ns_cbranch_scc0 L_MB")
    bias(sCHh, 0); setA(U[2], 0, xor=True)
    a("s_waitcnt vmcnt(8)"); bar()
    round_("T", gelu_ops(), dstream(3), False)
    bias(sCB, 1536); setA(U[3], U[4]); hoff(sCHh, 0)
    a("s_waitcnt vmcnt(9)"); flags_check(); bar()
    round_("T", gelu_ops(), {0: lambda: Whalf(0, 0), 3: lambda: Whalf(0, 1),
                             ('v', 13): lambda: (a("s_waitcnt vmcnt(2)"), signal(M1))}, False)
    a("s_branch L_MJ")
    a("L_MB:"); sc[0] -= 4
    a("s_waitcnt vmcnt(8)"); bar()
    for i in range(7): a(DLD + "\n" + DUP)
    call("EPI_GELU")
    bias(sCB, 1536); setA(U[3], U[4])
    a("s_waitcnt vmcnt(9)"); flags_check()
    latepf(1)
    a("s_xor_b32 s2, s2, 32"); latepf(1); a("s_xor_b32 s2, s2, 32")
    bar()
    round_("T", [], {0: lambda: Whalf(0, 0), 3: lambda: Whalf(0, 1),
                     ('v', 8): lambda: (a(f"s_waitcnt vmcnt({4 if PF else 2})"), signal(M1))}, False)
    a("L_MJ:")
    bias(sCB, 2560); setA(U[0], U[1]); hoff(sCB, 1536)
    bar()
    ex = {}
    for i in range(8): ex[3*i] = (lambda i=i: Whalf(1 + i // 2, i % 2))
    ex[('v', 6)] = lambda: only_ch(0, lambda: (a("s_waitcnt vmcnt(3)"), signal(MH)))
    round_("T", gelu_ops(), ex, False)
    hoff(sCB, 2560)
    bar()
    a("s_setprio 3")
    poll_issue(M1)
    for j in (5, 6): Whalf(j, 0); Whalf(j, 1)
    call("EPI_GELU")
    a("s_waitcnt vmcnt(6)"); signal(M2)
    a(f"s_mov_b32 s{sPUB}, 0\ns_branch L_P2")

    a("L_ATT:"); sc[0] = 5
    gemm_first("N")
    a(f"""
    v_and_b32 v{vT0}, 31, v{vL}
    v_cmp_gt_u32 s[{sDO}:{sDO+1}], 28, v{vT0}
    v_cmp_eq_u32 vcc, 28, v{vT0}
    v_mov_b32 v{vT1}, s{sONES}
    v_cndmask_b32 v{vMV}, 0, -1, s[{sDO}:{sDO+1}]
    v_cndmask_b32 v{vOV}, 0, v{vT1}, vcc
    v_cmp_gt_u32 vcc, 32, v{vL}
    v_cndmask_b32 v{vMLO}, 0, -1, vcc
    """)
    flags_load()
    a(f"s_mov_b32 s{sK1}, {f32(LOG2E)}\ns_mov_b32 s{sHOFF}, {f32(1e-6)}")
    setA(U[2], U[3])
    setD(SW, vOW, 32 * 2688, U[0], f"s{sU[5]}", U[4], f"s{sU[4]}")
    a("s_waitcnt vmcnt(0)"); bar()
    round_("N", phi_ops(PK), dstream(4), True)
    VV = TMP
    for p in range(8): a(f"v_cvt_pk_bf16_f32 v{VV+p}, v{UR+2*p}, v{UR+2*p+1}")
    for p in range(8): a(f"v_and_or_b32 v{VV+p}, v{VV+p}, v{vMV}, v{vOV}")
    a(f"{MF} {vr(ACC,16)}, {vr(PK,4)}, {vr(VV,4)}, 0\n{MF} {vr(ACC,16)}, {vr(PK+4,4)}, {vr(VV+4,4)}, {vr(ACC,16)}")
    a(f"""
    s_mul_i32 s{sT}, s{sCH}, {SCR[1] - SCR[0]}
    s_add_u32 s{sT}, s{sT}, {SCR[0]}
    s_lshl_b32 s3, s{sTT}, 10
    s_add_u32 s3, s3, s{sT}
    v_add_u32 v{vT1}, s3, v{vL16}
    s_lshl_b32 s3, s{sTT}, 12
    s_add_u32 s3, s3, s{sT}
    v_add_u32 v{vT3}, s3, v{vL16}
    """)
    for q in range(4): a(f"ds_write_b128 v{vT1}, {vr(ACC+4*q,4)} offset:{4096*q}")
    flags_check()
    a("s_waitcnt lgkmcnt(0)"); bar()
    for k in range(4): a(f"ds_read_b128 {vr(TMP+4*k,4)}, v{vT3} offset:{1024*k}")
    a(f"""
    s_lshl_b32 s3, s{sHEAD}, 12
    s_lshl_b32 s{sT}, s{sTT}, 10
    s_add_u32 s{sT}, s3, s{sT}
    s_add_u32 s{sT}, s{sT}, {WS_KV}
    v_lshlrev_b32 v{vT0}, 2, v{vL}
    """)
    setA(U[4], U[0])
    a("s_waitcnt lgkmcnt(0)")
    for j in range(4): a(f"v_add_f32 v{TMP+j}, v{TMP+j}, v{TMP+4+j}\nv_add_f32 v{TMP+8+j}, v{TMP+8+j}, v{TMP+12+j}")
    for j in range(4): a(f"v_add_f32 v{TMP+j}, v{TMP+j}, v{TMP+8+j}")
    for j in range(4): a(f"buffer_atomic_add_f32 v{TMP+j}, v{vT0}, {sr(SH,4)}, s{sT} offen offset:{256*j}")
    SL_A = [U[2], U[2] + 16384, U[2] + 32768, 32768, U[2] + 49152, U[2] + 65536, 0, 16384]
    p2_setup(SL_A)
    a(f"s_cmp_eq_u32 s{sP2}, 0\ns_cselect_b32 s{SW2+2}, 0, s{SW2+2}")
    a("s_waitcnt vmcnt(4)"); bar()
    ex = {}
    for i in range(8): ex[3*i] = (lambda i=i: Whalf(i // 2, i % 2))
    round_("T", [], ex, True)
    a("s_waitcnt vmcnt(8)"); bar()
    a("s_setprio 3")
    lx = L("KS")
    a(f"s_cmp_lg_u32 s{sW}, 0\ns_cbranch_scc1 {lx}"); flag_store(0); a(f"{lx}:")
    Whalf(4, 0); Whalf(4, 1)
    poll_issue(M1)
    for j in (5, 6): Whalf(j, 0); Whalf(j, 1)
    for c, t in phi_ops(PQ): a(t)
    for p in (6, 7): a(f"v_and_b32 v{PQ+p}, v{vMLO}, v{PQ+p}")
    a(f"s_mov_b32 s{sPUB}, 2\ns_waitcnt vmcnt(4)\ns_cmp_eq_u32 s{sP2}, 0\ns_cbranch_scc0 L_P2")
    poll_issue("K"); a("s_waitcnt vmcnt(0)")
    a(f"s_call_b64 s[{sRET}:{sRET+1}], OST_LOAD\ns_waitcnt vmcnt(0)\ns_call_b64 s[{sRET}:{sRET+1}], OST_COMP\ns_waitcnt vmcnt(0)")
    signal(MO)
    a("s_branch L_END")
    KVR = BB + 48; KP = BB + 64; OACC = 40; OP = 32
    KVL = MISC
    def ost_load():
        poll_check("K")
        a(f"s_lshl_b32 s3, s{sG}, 3\ns_add_u32 s3, s3, s{sW}\ns_lshl_b32 s3, s3, 10\ns_add_u32 s3, s3, {WS_KV}")
        a(f"buffer_load_dwordx4 {vr(KVR,4)}, v{vL16}, {sr(SH,4)}, s3 offen sc1")
    def ost_comp():
        a(f"s_lshl_b32 s3, s{sW}, 10\ns_add_u32 s3, s3, {KVL}\nv_add_u32 v{vT0}, s3, v{vL16}\nds_write_b128 v{vT0}, {vr(KVR,4)}")
        a(f"s_lshl_b32 s3, s{sCH}, 12\ns_add_u32 s3, s3, {KVL}\nv_lshlrev_b32 v{vT0}, 2, v{vL}\nv_add_u32 v{vT0}, s3, v{vT0}\ns_waitcnt lgkmcnt(0)\ns_barrier")
        for r in range(0, 16, 2): a(f"ds_read2st64_b32 {vr(KVR+r,2)}, v{vT0} offset0:{r} offset1:{r+1}")
        a("s_waitcnt lgkmcnt(0)")
        a(f"s_lshl_b32 s3, s{sHEAD}, 11\ns_add_u32 s3, s3, {112*1024}\ns_add_u32 s{sHOFF}, s{sTGB}, s3")
        for p in range(8): a(f"v_cvt_pk_bf16_f32 v{KP+p}, v{KVR+2*p}, v{KVR+2*p+1}")
        for p in (6, 7): a(f"v_and_b32 v{KP+p}, v{vMLO}, v{KP+p}")
        a(f"{MF} {vr(OACC,16)}, {vr(KP,4)}, {vr(PQ,4)}, 0\n{MF} {vr(OACC,16)}, {vr(KP+4,4)}, {vr(PQ+4,4)}, {vr(OACC,16)}")
        a(f"v_mov_b32 v{vT1}, v{OACC+12}\nv_mov_b32 v{vT2}, v{OACC+12}\nv_permlane32_swap_b32 v{vT1}, v{vT2}")
        a(f"v_add_f32 v{vT2}, {f32(1e-6)}, v{vT2}\nv_rcp_f32 v{vT2}, v{vT2}")
        for i in range(16): a(f"v_mul_f32 v{OACC+i}, v{OACC+i}, v{vT2}")
        for p in range(8): a(f"v_cvt_pk_bf16_f32 v{OP+p}, v{OACC+2*p}, v{OACC+2*p+1}")
        for p in (6, 7): a(f"v_and_b32 v{OP+p}, v{vMLO}, v{OP+p}")
        a(f"buffer_store_dwordx4 {vr(OP,4)}, v{vL16}, {sr(SH,4)}, s{sHOFF} offen sc1")
        a(f"buffer_store_dwordx4 {vr(OP+4,4)}, v{vL16}, {sr(SH,4)}, s{sHOFF} offen offset:1024 sc1")

    if P2ONLY:
        a(f"L_DBG:\ns_cmp_eq_u32 s{sP2}, 0\ns_cbranch_scc1 L_END\nv_mov_b32 v{vOWP}, v{vOWP1}\ns_waitcnt vmcnt(0)")
        p2_setup(SL_M)
        for j in range(5): Whalf(j, 0); Whalf(j, 1)
        a("s_waitcnt vmcnt(0)\ns_barrier\ns_setprio 3")
        stamp(a, 29)
        for j in (5, 6): Whalf(j, 0); Whalf(j, 1)
        a(f"s_mov_b32 s{sPUB}, 3")
    a("L_P2:")
    stamp(a, 30)
    vm = Cnt(a, "vmcnt", 63); lk = Cnt(a, "lgkmcnt", 15)
    vm.add("OLD")
    def TRj(j):
        vm.wait(("W", j))
        a(f"v_add_u32 v{vB0}, s{sSL[j%8]}, v{vBL0}\nv_xor_b32 v{vB1}, 64, v{vB0}")
        if len(lk.q) > 8: a("s_waitcnt lgkmcnt(8)"); lk.q = lk.q[-8:]
        for c in range(2):
            b = ABL[j % 8] + 4 * c
            a(f"ds_read_b64_tr_b16 {vr(b,2)}, v{vB0+c}\nds_read_b64_tr_b16 {vr(b+2,2)}, v{vB0+c} offset:1024")
        lk.add(("A", j), 4)
    def Wj(j):
        lk.wait(("A", j - 8)); Whalf(j, 0); Whalf(j, 1); vm.add(("W", j), 2)
    def Hj(j):
        Hhalf(j, 0); Hhalf(j, 1); vm.add(("H", j), 2)
    def Mj(j):
        vm.wait(("H", j)); lk.wait(("A", j))
        for t in range(2):
            for c in range(2):
                D = vr(ACC2 + 32*t + 16*c, 16)
                a(f"{MF} {D}, {vr(ABL[j%8]+4*c,4)}, {vr(BB+(j%NB)*8+4*t,4)}, {'0' if j == 0 else D}")
    def only(val, f):
        l = L("O"); a(f"s_cmp_eq_u32 s{sPUB}, {val}\ns_cbranch_scc0 {l}"); f(); a(f"{l}:")
    def P(m):
        if NOPOLL: return
        poll_issue(m); vm.add("P")
    def chk(m): vm.wait("P"); poll_check(m)
    def sub(l): a(f"s_call_b64 s[{sRET}:{sRET+1}], {l}")
    RES = 248
    def resld():
        srd(a, SDM, pB2, 896)
        a(f"""
        v_and_b32 v{vT0}, 31, v{vL}
        v_lshrrev_b32 v{vT2}, 5, v{vL}
        v_mul_u32_u24 v{vXO}, 896, v{vT0}
        v_lshl_add_u32 v{vXO}, v{vT2}, 4, v{vXO}
        s_lshr_b32 s{sT2}, s{sKQ}, 2
        s_lshl_b32 s3, s{sRT}, 1
        s_add_u32 s3, s3, s{sT2}
        s_mul_i32 s3, s3, {32*896}
        s_lshl_b32 s{sT}, s{sCT}, 7
        s_and_b32 s{sT2}, s{sKQ}, 3
        s_lshl_b32 s{sT2}, s{sT2}, 5
        s_add_u32 s{sT}, s{sT}, s{sT2}
        s_add_u32 s3, s3, s{sT}
        v_add_u32 v{vXO}, s3, v{vXO}
        v_lshlrev_b32 v{vT1}, 4, v{vT2}
        buffer_load_dwordx4 {vr(RES,4)}, v{vXO}, {sr(SX,4)}, 0 offen
        buffer_load_dwordx4 {vr(RES+4 if not PROF else 20,4)}, v{vT1}, {sr(SDM,4)}, s{sT} offen
        """)
        vm.add("R", 2)
    cnt = [0]; pos = {("W", j): -100 for j in range(5)}; pos[("W", 5)] = -4; pos[("W", 6)] = -2
    doneT, doneM = [0], [0]
    allowM = [False]
    def pump(final=False):
        prog = True
        while prog:
            prog = False
            j = doneT[0]
            if j < 18 and ("W", j) in pos and (final or cnt[0] - pos[("W", j)] >= LA) and (j < 8 or doneM[0] > j - 8):
                if j in (5, 6): vm.wait("OLD")
                TRj(j); doneT[0] += 1; prog = True
            j = doneM[0]
            if allowM[0] and j < 18 and ("H", j) in pos and doneT[0] > j and (final or cnt[0] - pos[("H", j)] >= LA):
                Mj(j); doneM[0] += 1; prog = True
    def force_T(j):
        while doneT[0] <= j:
            k = doneT[0]
            if k >= 8: force_M(k - 8)
            if k in (5, 6): vm.wait("OLD")
            TRj(k); doneT[0] += 1
    def force_M(j):
        while doneM[0] <= j:
            force_T(doneM[0]); Mj(doneM[0]); doneM[0] += 1
    def marks(tag): return len(vm.q) - 1 - max(i for i, t in enumerate(vm.q) if t == tag)
    seq = ["W7", "W8", "W9", "sigF", "W10", "W11", "pK", "W12", "cM1", "H0", "H1", "oL", "pMH", "H2", "H3", "oC", "W13", "W14", "cMH", "pM2", "H4", "H5", "W15",
           "sigO", "W16", "W17", "cM2", "pMF", "H6", "H7", "H8", "H9", "cMF", "pMO", "H10", "H11", "H12", "H13", "cMO", "R", "H14", "H15", "H16", "H17"]
    MM = {"M1": M1, "MH": MH, "M2": M2, "MF": MF_, "MO": MO}
    mk = {}
    for it in seq:
        if it[0] == "W":
            j = int(it[1:])
            if j >= 8: force_T(j - 8); Wj(j)
            else: Whalf(j, 0); Whalf(j, 1); vm.add(("W", j), 2)
            cnt[0] += 2; pos[("W", j)] = cnt[0]
        elif it[0] == "H":
            j = int(it[1:])
            if j >= NB: force_M(j - NB)
            Hj(j); cnt[0] += 2; pos[("H", j)] = cnt[0]
        elif it == "R": resld(); cnt[0] += 2
        elif it == "sigF":
            vm.wait("OLD"); only(0, lambda: signal(MF_)); stamp(a, 31); a("s_setprio 2")
        elif it == "pK": only(2, lambda: poll_issue("K")); mk["K"] = cnt[0] + mk.get("np", 0)
        elif it == "oL":
            n = cnt[0] + mk.get("np", 0) - mk["K"]
            only(2, lambda: (a(f"s_setprio 3\ns_waitcnt vmcnt({n})"), sub("OST_LOAD"), a("s_setprio 2"))); mk["K"] = cnt[0] + mk.get("np", 0)
        elif it == "oC":
            n = cnt[0] + mk.get("np", 0) - mk["K"]
            only(2, lambda: (a(f"s_setprio 3\ns_waitcnt vmcnt({n})"), sub("OST_COMP"), a("s_setprio 2"))); mk["K"] = cnt[0] + mk.get("np", 0)
            allowM[0] = True
        elif it == "sigO":
            n = cnt[0] + mk.get("np", 0) - mk["K"]
            stamp(a, 32)
            only(2, lambda: (a(f"s_setprio 3\ns_waitcnt vmcnt({n})"), signal(MO), a("s_setprio 2")))
        elif it[0] == "p":
            P(MM[it[1:]]); mk["np"] = mk.get("np", 0) + (0 if NOPOLL else 1)
        elif it[0] == "c":
            chk(MM[it[1:]])
            if it == "cM2": a("s_setprio 1"); stamp(a, 33)
            if it == "cMF": stamp(a, 34)
            if it == "cMO": a("s_setprio 0"); stamp(a, 35)
        pump()
    pump(final=True)
    assert doneM[0] == 18
    stamp(a, 50)
    for d in range(8):
        a(f"v_add_u32 v{vT0 + d % 2}, s{sSL[d]}, v{vL16}")
        for hh in range(2): a(f"ds_write_b128 v{vT0 + d % 2}, {vr(ACC2 + 8*d + 4*hh, 4)} offset:{hh*1024}")
    a(f"v_add_u32 v{vT2}, s{sHK}, v{vL16}")
    srd(a, SDM, pOUT, 2048 * 896)
    R = BB + 16; T = BB
    vm.wait("R")
    for j, src in enumerate((RES, RES+4 if not PROF else 20)):
        for d in range(4):
            a(f"v_lshlrev_b32 v{T+8*j+2*d}, 16, v{src+d}\nv_and_b32 v{T+8*j+2*d+1}, s{sMASKHI}, v{src+d}")
    for i in range(8): a(f"v_add_f32 v{T+i}, v{T+i}, v{T+8+i}")
    a("s_waitcnt lgkmcnt(0)\ns_barrier")
    stamp(a, 49)
    for k in range(8):
        for hh in range(2):
            if k == 6 and hh == 0: a("s_waitcnt lgkmcnt(4)")
            a(f"ds_read_b128 {vr(R + 8*k + 4*hh, 4)}, v{vT2} offset:{k*2048 + hh*1024}")
    for k in (0, 2):
        for i in range(8): a(f"v_add_f32 v{R+8*k+i}, v{R+8*k+i}, v{R+8*k+8+i}")
    for i in range(8): a(f"v_add_f32 v{R+i}, v{R+i}, v{R+16+i}")
    a("s_waitcnt lgkmcnt(0)")
    for k in (4, 6):
        for i in range(8): a(f"v_add_f32 v{R+8*k+i}, v{R+8*k+i}, v{R+8*k+8+i}")
    for i in range(8): a(f"v_add_f32 v{R+32+i}, v{R+32+i}, v{R+48+i}")
    for i in range(8): a(f"v_add_f32 v{R+i}, v{R+i}, v{R+32+i}")
    for j in range(4): a(f"v_permlane32_swap_b32 v{R+j}, v{R+4+j}")
    for i in range(8): a(f"v_add_f32 v{R+i}, v{R+i}, v{T+i}")
    for p in range(4): a(f"v_cvt_pk_bf16_f32 v{T+p}, v{R+2*p}, v{R+2*p+1}")
    a(f"buffer_store_dwordx4 {vr(T,4)}, v{vXO}, {sr(SDM,4)}, 0 offen")
    a("L_END:")
    stamp(a, 51)
    if PROF:
        a("s_waitcnt vmcnt(0)"); stamp(a, 52); stamp_rt(a, 63)
        a(f"s_lshl_b32 s3, s2, 3\ns_add_u32 s3, s3, s{sW}\ns_lshl_b32 s3, s3, 8\ns_add_u32 s3, s3, {WS_PROF}\nv_lshlrev_b32 v255, 2, v{vL}\nbuffer_store_dword v254, v255, {sr(SH,4)}, s3 offen")
    a("L_EXIT:\ns_endpgm")

    RETI = f"s_setpc_b64 s[{sRET}:{sRET+1}]"
    a.hist = []
    a("OST_LOAD:"); ost_load(); a(RETI)
    a.hist = []
    a("OST_COMP:"); ost_comp(); a(RETI)
    a.hist = []
    a("EPI_GELU:")
    for c, t in gelu_ops(): a(t)
    a(RETI)
    a.raw(".fill 1024, 4, 0xbf800000")
    return name

def main(out):
    a = Asm()
    a.raw('.amdgcn_target "amdgcn-amd-amdhsa--gfx950"\n.text')
    name = gen(a)
    txt = HDR + f"; @launch grid=(256,1,1) block=(512,1,1) lds={LDS}\n" + a.text()
    txt += f""".section .rodata,"a"
.p2align 6
.amdhsa_kernel {name}
  .amdhsa_next_free_vgpr 256
  .amdhsa_next_free_sgpr 102
  .amdhsa_accum_offset 256
  .amdhsa_group_segment_fixed_size 0
  .amdhsa_kernarg_size 88
  .amdhsa_user_sgpr_count 2
  .amdhsa_user_sgpr_kernarg_segment_ptr 1
  .amdhsa_system_sgpr_workgroup_id_x 1
.end_amdhsa_kernel
"""
    if NOPRIO:
        i0 = txt.index("L_P2:")
        txt = txt[:i0] + "\n".join("    s_nop 0" if "s_setprio" in l else l for l in txt[i0:].split("\n"))
    if PLAINST:
        txt = "\n".join(l.replace(" sc1", "") if "buffer_store_dwordx4" in l else l for l in txt.split("\n"))
    open(out, "w").write(txt)
    print("nops inserted:", a.nops, "lines:", txt.count("\n"))

if __name__ == "__main__":
    main(sys.argv[1] if len(sys.argv) > 1 and not sys.argv[1].startswith("--") else "cdna_kernels/%s.s" % NAME)
```

```python
import sys, math
from asmlib import *

NAME = "parallel_sum__linear_attn_block__mixer_channel_mlp__prompt"
HDR = open("cdna_kernels/%s.s.ref" % NAME).read().split("; Override launch geometry")[0]
DIAG = int(([x[7:] for x in sys.argv if x.startswith("--diag=")] or ["-1"])[0])
DTYPE = int(([x[8:] for x in sys.argv if x.startswith("--dtype=")] or ["1"])[0])
PROF = "--prof" in sys.argv or DIAG >= 0
FINE = "--fine" in sys.argv
P2ONLY = "--p2only" in sys.argv
NOSC1 = "--nosc1" in sys.argv
NOCHK = "--nochk" in sys.argv
SEQ = int(([x[6:] for x in sys.argv if x.startswith("--seq=")] or ["1"])[0])
OUTF = ([x[7:] for x in sys.argv if x.startswith("--outf=")] or [""])[0]
LA = int(([x[5:] for x in sys.argv if x.startswith("--la=")] or ["8"])[0])
NOPRIO = "--noprio" in sys.argv
NOPOLL = "--nopoll" in sys.argv
NOATOM = "--noatom" in sys.argv
PLAINST = "--plainst" in sys.argv
PF = "--nopf" not in sys.argv
EPF = "--epf" in sys.argv
CPF = "--nocpf" not in sys.argv
L2W = "--l2w" in sys.argv
L2V = "--l2v" in sys.argv
L2H = "--nol2h" not in sys.argv

WS_KV = 0xA00000
WS_CNT = 0xA10000
WS_CNT2 = 0xA20000
WS_PART = 0xC00000
WS_SIZE = 0x1000000
WS_PROF = 0xB00000
UNIT = 28672
U = [0, UNIT, 2 * UNIT, 3 * UNIT, 4 * UNIT]
RING = [U[2], U[3], U[4], U[0], U[1]]
XB = 3 * UNIT
MISC = XB + 65536
BI = MISC
LCNT = 163840 - 64
SCR = [U[1], 5 * UNIT]
LDS = 163840
OOB_M0 = 0x38000
LOG2E = 1.4426950408889634
K0 = -2.0 * math.sqrt(2.0 / math.pi) * LOG2E
K1 = K0 * 0.044715
SPIN = 200000
M1, M2, MF_, MO, MH, MP = 0, 1, 2, 3, 4, 5
NKS = 144
W2U = 224 * 896

pX, pWQKV, pWO, pW1, pB1, pW2, pB2, pOUT, pDBG, pWS = 16, 18, 20, 24, 26, 28, 30, 32, 34, 36
SX, SW, SH, SD, SW2, SWO, SDM = 40, 44, 48, 52, 56, 60, 64
(sW, sRG, sG, sTYPE, sSTR, sT, sT2, sCH, sTT, sMASKHI, sONES, sK1, sHOFF, sTGB, sCHh, sKQ, sHEAD, sSPIN,
 sDO, sDSTEP, sTT2, sKH, sP2, sCT, sRT, sWL, sCB) = range(68, 95)
sRET = 96; sSEL = 98
sU = [4, 5, 6, 7, 8, 9, 10]
sMS = 11; sKC = 12; sPW = 13; sPUB = 14; sROT = 15; sHB = 95; sX0 = 100; sX1 = 101
sHK = 22
vHK = 123; vPF = 124
vL, vT0, vT1, vT2, vT3 = 1, 2, 3, 4, 5
vOX, vOW, vOW2, vXW, vAL, vA0, vA1, vL16, vK0, vBIA = 6, 7, 8, 9, 10, 11, 12, 13, 14, 15
vXR = [16, 17, 18, 19]
vMLO, vMV, vOV, vZ = 20, 21, 22, 23
ST = 24; PQ = 24
ACC = 32; BR = 48; AF = 64; TMP = 80; PK = 96; UR = 104
XR = 64
vFL = 120; vOWP1 = 121; vDM = 122
XF = 128
ACC2 = 24
ABL = [88, 96, 104, 112, 120, 224, 232, 240]; BB = 128; NB = 12
vB0, vB1, vBL0, vL16c, vXO, vOWP, vPL, vPK, vPO = 11, 12, 18, 9, 7, 6, 16, 17, 19
vOWQ = vOWP
sSL = [4, 5, 6, 7, 8, 9, 10, 99]
sWS = 98

def stamp(a, i, fine=False):
    if DIAG >= 0:
        if i in (0, DIAG): a(f"s_memrealtime s[38:39]\ns_waitcnt lgkmcnt(0)\nv_writelane_b32 v254, s38, {0 if i == 0 else 1}")
        return
    if PROF and (FINE or not fine): a(f"s_memtime s[38:39]\ns_waitcnt lgkmcnt(0)\nv_writelane_b32 v254, s38, {i}")
def stamp_rt(a, i):
    if DIAG >= 0: return
    if PROF: a(f"s_memrealtime s[38:39]\ns_waitcnt lgkmcnt(0)\nv_writelane_b32 v254, s38, {i}")
def srd(a, b, plo, size):
    a(f"s_mov_b64 s[{b}:{b+1}], s[{plo}:{plo+1}]\ns_mov_b32 s{b+2}, {size}\ns_mov_b32 s{b+3}, 0x20000")

class Cnt:
    def __init__(self, a, name, mx): self.a, self.name, self.mx, self.q = a, name, mx, []
    def add(self, tag, n=1): self.q += [tag] * n
    def wait(self, tag):
        idx = [i for i, t in enumerate(self.q) if t == tag]
        if not idx: return
        n = len(self.q) - 1 - idx[-1]
        self.a(f"s_waitcnt {self.name}({min(n, self.mx)})")
        self.q = self.q[idx[-1] + 1:]

def gen(a):
    name = NAME + "_kernel"
    a.raw(f".globl {name}\n.p2align 8\n.type {name},@function\n{name}:")
    MF = "v_mfma_f32_32x32x16_bf16"
    uid = [0]
    def L(p): uid[0] += 1; return f"L_{p}{uid[0]}"
    a("s_cmp_ge_u32 s2, 256\ns_cbranch_scc1 L_EXIT")
    if PROF: a("v_mov_b32 v254, 0")
    stamp(a, 0); stamp_rt(a, 62)
    a("s_load_dwordx16 s[16:31], s[0:1], 0\ns_load_dwordx4 s[32:35], s[0:1], 64\ns_load_dwordx2 s[36:37], s[0:1], 80")
    sWR = sHOFF
    a(f"""
    v_lshrrev_b32 v{vT0}, 6, v0
    v_and_b32 v{vL}, 63, v0
    v_readfirstlane_b32 s{sW}, v{vT0}
    s_and_b32 s{sT}, s2, 7
    s_lshr_b32 s{sT2}, s2, 3
    s_lshr_b32 s{sROT}, s{sT2}, 3
    s_lshr_b32 s{sRG}, s{sT}, 1
    s_lshl_b32 s{sRG}, s{sRG}, 2
    s_add_u32 s{sRG}, s{sRG}, s{sROT}
    s_and_b32 s{sT2}, s{sT2}, 7
    s_lshr_b32 s{sTYPE}, s{sT2}, 2
    s_and_b32 s{sG}, s{sT}, 1
    s_lshl_b32 s{sG}, s{sG}, 2
    s_and_b32 s3, s{sT2}, 3
    s_add_u32 s{sG}, s{sG}, s3
    s_lshl_b32 s{sRT}, s{sT}, 2
    s_add_u32 s{sRT}, s{sRT}, s{sROT}
    s_cmp_lg_u32 s{sT2}, 1
    s_cselect_b32 s{sP2}, 1, 0
    s_cmp_gt_u32 s{sT2}, 1
    s_cselect_b32 s3, 1, 0
    s_sub_u32 s{sCT}, s{sT2}, s3
    s_add_u32 s{sWR}, s{sW}, s{sT2}
    s_and_b32 s{sWR}, s{sWR}, 7
    s_lshr_b32 s{sCH}, s{sW}, 2
    s_and_b32 s{sTT}, s{sW}, 3
    v_lshrrev_b32 v{vT0}, 3, v{vL}
    v_and_b32 v{vT1}, 7, v{vL}
    v_mul_u32_u24 v{vOX}, 896, v{vT0}
    v_lshl_add_u32 v{vOX}, v{vT1}, 4, v{vOX}
    s_lshl_b32 s{sX0}, s{sRG}, 3
    s_add_u32 s{sX0}, s{sX0}, s{sWR}
    s_mul_i32 s{sX0}, s{sX0}, {16*896}
    s_add_u32 s{sX1}, s{sX0}, {8*896}
    v_lshlrev_b32 v{vL16}, 4, v{vL}
    v_mov_b32 v{vZ}, 0
    s_lshl_b32 s{sHEAD}, s{sG}, 1
    s_add_u32 s{sHEAD}, s{sHEAD}, s{sCH}
    s_mov_b32 s{SX+2}, {2048*896}
    s_mov_b32 s{SX+3}, 0x20000
    s_mov_b32 s{SH+2}, {WS_SIZE}
    s_mov_b32 s{SH+3}, 0x20000
    s_mov_b32 s{SDM+3}, 0x20000
    v_lshlrev_b32 v{vT2}, 7, v{vL}
    """)
    for i in range(4): a(f"v_mov_b32 v{ST+i}, 0")
    a(f"""
    s_waitcnt lgkmcnt(0)
    s_mov_b64 s[{SX}:{SX+1}], s[{pX}:{pX+1}]
    s_mov_b64 s[{SH}:{SH+1}], s[{pWS}:{pWS+1}]
    """)
    def xloads():
        for kb in range(7):
            for o in range(2):
                a(f"buffer_load_dwordx4 {vr(XR + (kb*2+o)*4, 4)}, v{vOX}, {sr(SX,4)}, s{sX0+o} offen offset:{kb*128}")
    def latepf(second):
        if not PF: return
        pa, pb, na, nb, za, zb = (pW2, pWO, 25, 7, 448*3584, 448*896) if second else (pW1, pWQKV, 25, 19, 448*3584, 448*2688)
        a(f"""
        s_cmp_lt_u32 s{sTT}, 2
        s_cselect_b64 s[{SDM}:{SDM+1}], s[{pa}:{pa+1}], s[{pb}:{pb+1}]
        s_cselect_b32 s{sT}, {na}, {nb}
        s_mov_b32 s{SDM+2}, {zb}
        s_cselect_b32 s{SDM+2}, {za}, s{SDM+2}
        s_and_b32 s3, s{sW}, 1
        s_lshl_b32 s{sSPIN}, s2, 1
        s_add_u32 s3, s3, s{sSPIN}
        s_mul_i32 s3, s3, s{sT}
        s_lshl_b32 s3, s3, 7
        v_lshlrev_b32 v{vT3}, 7, v{vL}
        s_bfm_b64 exec, s{sT}, 0
        buffer_load_dword v{vPF}, v{vT3}, {sr(SDM,4)}, s3 offen
        s_mov_b64 exec, -1
        """)
    a(f"s_setprio 3\ns_cmp_eq_u32 s{sCH}, 0\ns_cbranch_scc0 L_X1")
    xloads()
    a("s_setprio 0")
    a("s_branch L_X2\nL_X1:")
    if EPF:
        a(f"""
        s_cmp_gt_u32 s{sW}, 5
        s_cbranch_scc1 L_NPF
        s_cmp_eq_u32 s{sW}, 4
        s_cbranch_scc0 L_PFK
        s_mul_i32 s3, s2, 14
        v_add_u32 v{vT2}, s3, v{vL}
        v_lshrrev_b32 v{vT3}, 3, v{vT2}
        v_mul_u32_u24 v{vT3}, 3584, v{vT3}
        v_and_b32 v{vT2}, 7, v{vT2}
        v_lshl_add_u32 v{vT2}, v{vT2}, 7, v{vT3}
        s_mov_b64 exec, 0x3fff
        global_load_dword v{vFL}, v{vT2}, s[{pW1}:{pW1+1}]
        s_mov_b64 exec, -1
        s_branch L_NPF
L_PFK:
        s_mul_i32 s3, s2, 14
        v_add_u32 v{vT2}, s3, v{vL}
        v_lshrrev_b32 v{vT3}, 3, v{vT2}
        v_mul_u32_u24 v{vT3}, 2688, v{vT3}
        v_and_b32 v{vT2}, 7, v{vT2}
        v_lshl_add_u32 v{vT2}, v{vT2}, 7, v{vT3}
        s_mov_b64 exec, 0x3fff
        global_load_dword v{vFL}, v{vT2}, s[{pWQKV}:{pWQKV+1}] offset:896
        s_mov_b64 exec, -1
L_NPF:
        """)
    if CPF:
        a(f"""
        s_cmp_lg_u32 s{sW}, 6
        s_cbranch_scc1 L_NCP
        s_getpc_b64 s[{sRET}:{sRET+1}]
        s_lshr_b32 s3, s2, 3
        s_mul_i32 s3, s3, {7*128}
        v_add_u32 v{vT2}, s3, v{vT2}
        s_mov_b64 exec, 0x7f
        global_load_dword v{vFL}, v{vT2}, s[{sRET}:{sRET+1}]
        s_mov_b64 exec, -1
L_NCP:
        """)
    a(f"""
    s_cmp_eq_u32 s{sTYPE}, 0
    s_cbranch_scc0 L_ZM
    s_cmp_lg_u32 s{sRG}, 0
    s_cbranch_scc1 L_X2
    s_lshl_b32 s3, s{sG}, 13
    s_lshl_b32 s{sT}, s{sTT}, 11
    s_add_u32 s3, s3, s{sT}
    s_add_u32 s3, s3, {WS_KV}
    buffer_store_dwordx4 {vr(ST,4)}, v{vL16}, {sr(SH,4)}, s3 offen sc1
    buffer_store_dwordx4 {vr(ST,4)}, v{vL16}, {sr(SH,4)}, s3 offen offset:1024 sc1
    s_branch L_X2
L_ZM:
    s_mov_b64 s[{SDM}:{SDM+1}], s[{pB1}:{pB1+1}]
    s_mov_b32 s{SDM+2}, {1792*2}
    s_lshl_b32 s3, s{sTT}, 10
    buffer_load_dwordx4 {vr(BR,4)}, v{vL16}, {sr(SDM,4)}, s3 offen
    s_or_b32 s3, s{sG}, s{sTT}
    s_cmp_lg_u32 s3, 0
    s_cbranch_scc1 L_X2
    s_lshl_b32 s3, s{sRG}, 11
    s_add_u32 s3, s3, {WS_CNT2}
    buffer_store_dwordx4 {vr(ST,4)}, v{vL16}, {sr(SH,4)}, s3 offen sc1
    buffer_store_dwordx4 {vr(ST,4)}, v{vL16}, {sr(SH,4)}, s3 offen offset:1024 sc1
L_X2:
    """)
    srd(a, SD, pDBG, 256); srd(a, SW2, pW2, 1792 * 896); srd(a, SWO, pWO, 448 * 896)
    a(f"""
    s_add_u32 s{sWL}, s{sTT}, s{sROT}
    s_and_b32 s{sWL}, s{sWL}, 3
    s_cmp_eq_u32 s{sTYPE}, 0
    s_cselect_b64 s[{SW}:{SW+1}], s[{pWQKV}:{pWQKV+1}], s[{pW1}:{pW1+1}]
    s_mov_b32 s{SW+3}, 0x20000
    s_mov_b32 s{sSTR}, 3584
    s_cselect_b32 s{sSTR}, 2688, s{sSTR}
    s_mul_i32 s{SW+2}, s{sSTR}, 448
    s_cselect_b64 s[{sSEL}:{sSEL+1}], 0, -1
    s_mul_i32 s{sT}, s{sWL}, s{sSTR}
    s_cbranch_scc0 L_PM
    s_lshl_b32 s{sT}, s{sT}, 3
    s_mul_i32 s3, s{sG}, 112
    s_add_u32 s{sT}, s{sT}, s3
    s_add_u32 s{sU[0]}, s{sT}, 896
    s_add_u32 s{sU[1]}, s{sT}, {896 + 224*2688}
    s_add_u32 s{sU[2]}, s{sT}, 1792
    s_add_u32 s{sU[3]}, s{sT}, {1792 + 224*2688}
    s_mov_b32 s{sU[4]}, s{sT}
    s_add_u32 s{sU[5]}, s{sT}, {224*2688}
    s_mul_i32 s{sT2}, s{sCH}, 56
    s_branch L_PJ
L_PM:
    s_lshl_b32 s{sT}, s{sT}, 3
    s_lshl_b32 s{sCHh}, s{sG}, 6
    s_add_u32 s{sCHh}, s{sCHh}, 1024
    s_lshl_b32 s3, s{sG}, 7
    s_add_u32 s{sU[0]}, s{sT}, s3
    s_add_u32 s{sU[1]}, s{sU[0]}, {224*3584}
    s_add_u32 s{sU[2]}, s{sT}, s{sCHh}
    s_add_u32 s{sU[3]}, s{sU[0]}, 1536
    s_add_u32 s{sU[4]}, s{sU[0]}, {1536 + 224*3584}
    s_add_u32 s{sU[5]}, s{sU[0]}, 2560
    s_add_u32 s{sU[6]}, s{sU[0]}, {2560 + 224*3584}
    s_lshl_b32 s{sT2}, s{sCH}, 6
    s_add_u32 s{sCB}, s{sT2}, s3
L_PJ:
    s_lshl_b32 s{sDSTEP}, s{sSTR}, 5
    v_lshrrev_b32 v{vT2}, 2, v{vL}
    v_and_b32 v{vT2}, 4, v{vT2}
    v_xor_b32 v{vT2}, v{vT2}, v{vT1}
    v_mul_lo_u32 v{vT3}, v{vT0}, s{sSTR}
    v_lshl_add_u32 v{vOW}, v{vT2}, 4, v{vT3}
    v_mul_u32_u24 v{vOWP1}, 896, v{vT0}
    v_lshl_add_u32 v{vOWP1}, v{vT2}, 4, v{vOWP1}
    s_lshl_b32 s3, s{sCT}, 7
    v_add_u32 v{vOWP1}, s3, v{vOWP1}
    v_and_b32 v{vOW2}, 3, v{vT2}
    v_lshl_add_u32 v{vOW2}, v{vOW2}, 4, v{vT3}
    v_lshrrev_b32 v{vT2}, 2, v{vT2}
    s_mov_b32 s3, {224*3584}
    v_mul_lo_u32 v{vT2}, v{vT2}, s3
    v_add_u32 v{vOW2}, v{vOW2}, v{vT2}
    v_xor_b32 v{vT2}, v{vT0}, v{vT1}
    v_lshlrev_b32 v{vT2}, 4, v{vT2}
    v_lshl_add_u32 v{vXW}, v{vT1}, 9, v{vT2}
    s_lshr_b32 s3, s{sWR}, 1
    s_lshl_b32 s3, s3, 14
    s_and_b32 s{sT}, s{sWR}, 1
    s_lshl_b32 s{sT}, s{sT}, 8
    s_add_u32 s3, s3, s{sT}
    s_add_u32 s3, s3, {XB}
    v_add_u32 v{vXW}, s3, v{vXW}
    v_lshrrev_b32 v{vT2}, 5, v{vL}
    v_and_b32 v{vT3}, 31, v{vL}
    v_xor_b32 v{vT3}, v{vT3}, v{vT2}
    v_lshlrev_b32 v{vT3}, 4, v{vT3}
    v_lshl_add_u32 v{vT3}, v{vT2}, 9, v{vT3}
    s_lshl_b32 s3, s{sTT}, 14
    s_add_u32 s3, s3, {XB}
    """)
    for j in range(4):
        a(f"v_xor_b32 v{vXR[j]}, {32*j}, v{vT3}\nv_add_u32 v{vXR[j]}, s3, v{vXR[j]}")
    a(f"""
    v_and_b32 v{vT0}, 3, v{vL}
    v_lshlrev_b32 v{vT0}, 3, v{vT0}
    v_and_b32 v{vT1}, 16, v{vL}
    v_lshl_add_u32 v{vT0}, v{vT1}, 1, v{vT0}
    v_add_u32 v{vT0}, s{sT2}, v{vT0}
    v_and_b32 v{vT1}, 8, v{vL}
    v_lshlrev_b32 v{vT1}, 3, v{vT1}
    v_xor_b32 v{vT0}, v{vT0}, v{vT1}
    v_and_b32 v{vT1}, 12, v{vL}
    v_lshl_add_u32 v{vT0}, v{vT1}, 5, v{vT0}
    v_lshl_add_u32 v{vAL}, v{vT2}, 10, v{vT0}
    s_mov_b32 s{sMASKHI}, 0xffff0000
    s_mov_b32 s{sONES}, 0x3f803f80
    s_mov_b32 s{sK1}, {f32(K1)}
    v_mov_b32 v{vK0}, {f32(K0)}
    v_lshlrev_b32 v{vBIA}, 4, v{vT2}
    v_add_u32 v{vBIA}, {BI}, v{vBIA}
    s_lshl_b32 s{sTGB}, s{sRG}, 2
    s_add_u32 s{sTGB}, s{sTGB}, s{sTT}
    s_lshl_b32 s{sMS}, s{sRG}, 1
    s_add_u32 s{sMS}, s{sMS}, s{sTYPE}
    s_lshl_b32 s{sMS}, s{sMS}, 3
    s_add_u32 s{sMS}, s{sMS}, s{sG}
    s_lshl_b32 s{sMS}, s{sMS}, 7
    s_add_u32 s{sMS}, s{sMS}, {WS_CNT2}
    s_mul_i32 s{sTGB}, s{sTGB}, {NKS*1024}
    s_lshl_b32 s{sWL}, s{sWL}, 10
    s_mov_b32 m0, s{sWL}
    s_add_u32 s{sKQ}, s{sW}, s{sCT}
    s_and_b32 s{sKQ}, s{sKQ}, 7
    s_lshr_b32 s{sPW}, s{sRT}, 1
    s_lshl_b32 s{sPW}, s{sPW}, 11
    s_add_u32 s{sPW}, s{sPW}, {WS_CNT2}
    s_mul_i32 s{sHB}, s{sRT}, {2*NKS}
    s_add_u32 s{sHB}, s{sHB}, s{sKQ}
    s_lshl_b32 s{sHB}, s{sHB}, 10
    s_lshl_b32 s{sKC}, s{sG}, 7
    s_add_u32 s{sKC}, s{sKC}, {WS_CNT2}
    v_add_u32 v{vA0}, {U[0]}, v{vAL}
    v_add_u32 v{vA1}, {U[1]}, v{vAL}
    """)
    if P2ONLY: a("s_branch L_DBG")
    a(f"s_cmp_eq_u32 s{sCH}, 0\ns_cbranch_scc1 L_X3")
    xloads()
    a("s_setprio 1\nL_X3:")
    stamp(a, 1)
    for kb in range(7):
        a(f"s_waitcnt vmcnt({12 - 2*kb})")
        for d in range(4):
            for o in range(2):
                r = XR + (kb*2+o)*4 + d
                a(f"v_dot2c_f32_bf16 v{ST+o}, s{sONES}, v{r}\nv_dot2c_f32_bf16 v{ST+2+o}, v{r}, v{r}")
    stamp(a, 2)
    a(f"v_mov_b32 v{vOWP}, v{vOWP1}")
    for pat in ("quad_perm:[1,0,3,2]", "quad_perm:[2,3,0,1]", "row_half_mirror"):
        for i in range(4):
            a(f"v_add_f32_dpp v{ST+i}, v{ST+i}, v{ST+i} {pat} row_mask:0xf bank_mask:0xf")
    inv = f32(1.0 / 448.0); eps = f32(1e-5)
    for o in range(2): a(f"v_mul_f32 v{ST+o}, {inv}, v{ST+o}")
    for o in range(2): a(f"v_mul_f32 v{ST+2+o}, {inv}, v{ST+2+o}")
    for o in range(2): a(f"v_fma_f32 v{ST+2+o}, -v{ST+o}, v{ST+o}, v{ST+2+o}")
    for o in range(2): a(f"v_max_f32 v{ST+2+o}, 0, v{ST+2+o}")
    for o in range(2): a(f"v_add_f32 v{ST+4+o}, {eps}, v{ST+2+o}")
    for o in range(2): a(f"v_rsq_f32 v{ST+4+o}, v{ST+4+o}")
    for o in range(2): a(f"v_mul_f32 v{ST+2+o}, v{ST+2+o}, v{ST+4+o}")
    for o in range(2): a(f"v_mul_f32 v{ST+2+o}, v{ST+2+o}, v{ST+4+o}")
    for o in range(2): a(f"v_add_f32 v{ST+2+o}, {eps}, v{ST+2+o}")
    for o in range(2): a(f"v_rsq_f32 v{ST+2+o}, v{ST+2+o}")
    for o in range(2): a(f"v_cndmask_b32 v{ST+2+o}, 1.0, v{ST+2+o}, s[{sSEL}:{sSEL+1}]")
    a(f"v_mul_f32 v{ST+6}, v{ST+5}, v{ST+3}\nv_mul_f32 v{ST+4}, v{ST+4}, v{ST+2}")
    a(f"v_mul_f32 v{ST+5}, -v{ST}, v{ST+4}\nv_mul_f32 v{ST+7}, -v{ST+1}, v{ST+6}")
    NT = ACC
    def xw(kb, o, lk=None):
        a(f"ds_write_b128 v{vXW}, {vr(XR + (kb*2+o)*4, 4)} offset:{(kb%4)*4096 + o*128}")
        if lk: lk.add("w")
    def norm(kb):
        for o in range(2):
            t = NT + 8 * o
            r = XR + (kb*2+o)*4
            P = vr(ST+4+2*o, 2)
            for d in range(4): a(f"v_lshlrev_b32 v{t+2*d}, 16, v{r+d}\nv_and_b32 v{t+2*d+1}, s{sMASKHI}, v{r+d}")
            for d in range(4): a(f"v_pk_fma_f32 {vr(t+2*d,2)}, {vr(t+2*d,2)}, {P}, {P} op_sel:[0,0,1] op_sel_hi:[1,0,1]")
            for d in range(4): a(f"v_cvt_pk_bf16_f32 v{r+d}, v{t+2*d}, v{t+2*d+1}")
            if kb < 4: xw(kb, o)
    def xr(s, lk=None):
        a(f"ds_read_b128 {vr(XF + 4*s, 4)}, v{vXR[s%4]} offset:{(s%16)*1024}")
        if lk: lk.add(("x", s))
    def dmas(n, S, vo, src, step, lstep=4096):
        for i in range(n):
            a(f"buffer_load_dwordx4 v{vo}, {sr(S,4)}, s{src} offen lds\ns_add_u32 s{src}, s{src}, {step}\ns_add_u32 m0, m0, {lstep}")
    def burst(S, vo, slot, src, step):
        a(f"s_add_u32 m0, s{sWL}, {slot}"); dmas(7, S, vo, src, step)
    def only_ch(ch, f):
        l = L("C"); a(f"s_cmp_eq_u32 s{sCH}, {ch}\ns_cbranch_scc0 {l}"); f(); a(f"{l}:")
    ST_ = f"s{sDSTEP}"
    norm(0); norm(1)
    only_ch(0, lambda: (latepf(0), dmas(7, SW, vOW, sU[0], ST_)))
    norm(2); norm(3)
    only_ch(0, lambda: burst(SW, vOW, U[1], sU[1], ST_))
    def b_misc():
        lb = L("NB")
        a(f"s_cmp_eq_u32 s{sTYPE}, 0\ns_cbranch_scc1 {lb}")
        for d in range(4): a(f"v_lshlrev_b32 v{NT+2*d}, 16, v{BR+d}\nv_and_b32 v{NT+2*d+1}, s{sMASKHI}, v{BR+d}")
        a(f"s_lshl_b32 s3, s{sTT}, 11\ns_add_u32 s3, s3, {BI}\nv_lshlrev_b32 v{vT0}, 5, v{vL}\nv_add_u32 v{vT0}, s3, v{vT0}")
        a(f"ds_write_b128 v{vT0}, {vr(NT,4)}\nds_write_b128 v{vT0}, {vr(NT+4,4)} offset:16\n{lb}:")
        a(f"v_mov_b32 v{vT0}, {LCNT}\nv_mov_b32 v{vT2}, 0\nv_mov_b32 v{vT3}, 0\nds_write_b64 v{vT0}, v[{vT2}:{vT3}]\nds_write_b64 v{vT0}, v[{vT2}:{vT3}] offset:8\nds_write_b64 v{vT0}, v[{vT2}:{vT3}] offset:16\ns_setprio 0")
    only_ch(1, b_misc)
    stamp(a, 3)

    def setA(lo, hi, xor=False):
        a(f"v_add_u32 v{vA0}, {lo}, v{vAL}")
        if xor: a(f"v_xor_b32 v{vA1}, 64, v{vA0}")
        else: a(f"v_add_u32 v{vA1}, {hi}, v{vAL}")
    sc = [4]
    def call(l):
        a(f"s_call_b64 s[{sRET}:{sRET+1}], {l}")
        stamp(a, sc[0], True); sc[0] += 1
    def bar(fine=False):
        a("s_barrier"); stamp(a, sc[0], fine); sc[0] += 1
    def bias(cb_sgpr, add, lk=None):
        a(f"s_lshl_b32 s3, s{cb_sgpr}, 1\nv_add_u32 v{vT0}, s3, v{vBIA}")
        for i in range(4): a(f"ds_read_b128 {vr(BR+4*i,4)}, v{vT0} offset:{2*add + 32*i}")
        if lk: lk.add("b", 4)
    def hoff(cb_sgpr, add):
        a(f"s_lshl_b32 s3, s{cb_sgpr}, 5\ns_add_u32 s3, s3, {32*add}\ns_add_u32 s{sHOFF}, s3, s{sTGB}")
    def trd(s, lk=None):
        va = vA0 if s < 14 else vA1
        b = AF + 4 * (s % 4)
        a(f"ds_read_b64_tr_b16 {vr(b,2)}, v{va} offset:{(s%14)*2048}\nds_read_b64_tr_b16 {vr(b+2,2)}, v{va} offset:{(s%14)*2048+512}")
        if lk: lk.add(("t", s), 2)
    def mf(s, orient, czero=False):
        A, B = vr(AF + 4*(s%4), 4), vr(XF + 4*s, 4)
        if orient == "N": A, B = B, A
        C = ("0" if czero else vr(BR, 16)) if s == 0 else vr(ACC, 16)
        a(f"{MF} {vr(UR if s == 27 else ACC,16)}, {A}, {B}, {C}")
    def setD(S, vo, step, slotA, srcA, slotB, srcB, vo2=None):
        a(f"s_mov_b64 s[{SDM}:{SDM+1}], s[{S}:{S+1}]\ns_mov_b32 s{SDM+2}, s{S+2}\ns_mov_b32 s{sDSTEP}, {step}")
        a(f"s_mov_b32 s3, {slotB}\ns_mov_b32 s{sDO}, {srcB}\ns_cmp_eq_u32 s{sCH}, 0\ns_cselect_b32 s3, {slotA}, s3\ns_cselect_b32 s{sDO}, {srcA}, s{sDO}")
        if vo2 is None: a(f"v_mov_b32 v{vDM}, v{vo}")
        else: a(f"s_cselect_b64 vcc, -1, 0\nv_cndmask_b32 v{vDM}, v{vo2}, v{vo}, vcc")
        a(f"s_add_u32 m0, s{sWL}, s3")
    DLD = f"buffer_load_dwordx4 v{vDM}, {sr(SDM,4)}, s{sDO} offen lds"
    DUP = f"s_add_u32 m0, m0, 4096\ns_add_u32 s{sDO}, s{sDO}, s{sDSTEP}"
    def flags_load():
        a(f"v_lshlrev_b32 v{vT1}, 2, v{vL}\nbuffer_load_dword v{vFL}, v{vT1}, {sr(SD,4)}, 0 offen sc1")
    def flags_check():
        lc, ld = L("FC"), L("FD")
        a(f"""
        s_mov_b32 s{sSPIN}, 0
{lc}:
        v_cmp_ne_u32 vcc, 0, v{vFL}
        s_and_b32 s3, vcc_lo, 0xffff00ff
        s_cmp_eq_u32 s3, 0xffff00ff
        s_cbranch_scc1 {ld}
        s_add_u32 s{sSPIN}, s{sSPIN}, 1
        s_cmp_gt_u32 s{sSPIN}, {SPIN}
        s_cbranch_scc1 {ld}
        """)
        flags_load()
        a(f"s_waitcnt vmcnt(0)\ns_branch {lc}\n{ld}:")
    def flag_store(word):
        a(f"v_mov_b32 v{vT2}, 1\ns_mov_b64 exec, 1\nbuffer_store_dword v{vT2}, v{vZ}, {sr(SH,4)}, s{sMS} offen offset:{4*word} sc1\ns_mov_b64 exec, -1")
    def signal(m):
        if NOATOM: return
        l = L("SG")
        a(f"""
        v_mov_b32 v{vT1}, {LCNT + 4*m}
        v_mov_b32 v{vT2}, 1
        s_mov_b64 exec, 1
        ds_add_rtn_u32 v{vT3}, v{vT1}, v{vT2}
        s_mov_b64 exec, -1
        s_waitcnt lgkmcnt(0)
        v_readfirstlane_b32 s3, v{vT3}
        s_cmp_lg_u32 s3, {3 if m == MH else 7}
        s_cbranch_scc1 {l}
        """)
        if m == MP: a(f"s_lshl_b32 s{sMS}, s{sCT}, 7\ns_add_u32 s{sMS}, s{sMS}, s{sPW}")
        flag_store({M1: 0, M2: 1, MF_: 2, MO: 1, MH: 3, MP: 2}[m])
        a(f"{l}:")
    PQ4 = 248
    PINFO = {M1: (PQ4, 0xff00), M2: (PQ4 + 1, 0xff00), MF_: (PQ4 + 2, 0xff00), MH: (PQ4 + 3, 0xff00), MO: (PQ4 + 1, 0xff), MP: (PQ4 + 2, 0xff), "K": (vPK, 0xffff)}
    def poll_issue(m):
        vreg, ex = PINFO[m]
        if m == "K": a(f"v_lshlrev_b32 v{vT0}, 11, v{vL}\ns_mov_b64 exec, {ex}\nbuffer_load_dword v{vPK}, v{vT0}, {sr(SH,4)}, s{sKC} offen sc1\ns_mov_b64 exec, -1")
        else: a(f"s_mov_b64 exec, {ex}\nbuffer_load_dwordx4 {vr(PQ4,4)}, v{vPO}, {sr(SH,4)}, s{sPW} offen sc1\ns_mov_b64 exec, -1")
    def poll_check(m):
        if P2ONLY or NOCHK: return
        vreg, ex = PINFO[m]
        if m == MP: a(f"s_lshl_b32 s{sT}, 1, s{sCT}"); ex = f"s{sT}"
        lc, ld = L("PC"), L("PD")
        a(f"""
        s_mov_b32 s{sSPIN}, 0
{lc}:
        v_cmp_eq_u32 vcc, 1, v{vreg}
        s_and_b32 s3, vcc_lo, {ex}
        s_cmp_eq_u32 s3, {ex}
        s_cbranch_scc1 {ld}
        s_add_u32 s{sSPIN}, s{sSPIN}, 1
        s_cmp_gt_u32 s{sSPIN}, {SPIN}
        s_cbranch_scc1 {ld}
        s_sleep 4
        """)
        poll_issue(m)
        a(f"s_waitcnt vmcnt(0)\ns_branch {lc}\n{ld}:")
    def gelu_ops():
        ops = []
        ops += [(1, f"v_mul_f32 v{TMP+i}, v{UR+i}, v{UR+i}") for i in range(16)]
        ops += [(1, f"v_fma_f32 v{TMP+i}, v{TMP+i}, s{sK1}, v{vK0}") for i in range(16)]
        ops += [(1, f"v_mul_f32 v{TMP+i}, v{TMP+i}, v{UR+i}") for i in range(16)]
        ops += [(2, f"v_exp_f32 v{TMP+i}, v{TMP+i}") for i in range(16)]
        ops += [(1, f"v_add_f32 v{TMP+i}, 1.0, v{TMP+i}") for i in range(16)]
        ops += [(2, f"v_rcp_f32 v{TMP+i}, v{TMP+i}") for i in range(16)]
        ops += [(1, f"v_mul_f32 v{TMP+i}, v{TMP+i}, v{UR+i}") for i in range(16)]
        ops += [(1, f"v_cvt_pk_bf16_f32 v{PK+p}, v{TMP+2*p}, v{TMP+2*p+1}") for p in range(8)]
        ops += [(1, f"buffer_store_dwordx4 {vr(PK,4)}, v{vL16}, {sr(SH,4)}, s{sHOFF} offen sc1")]
        ops += [(1, f"buffer_store_dwordx4 {vr(PK+4,4)}, v{vL16}, {sr(SH,4)}, s{sHOFF} offen offset:1024 sc1")]
        return ops
    def phi_ops(dst):
        ops = [(1, f"v_mul_f32 v{TMP+i}, s{sK1}, v{UR+i}") for i in range(16)]
        ops += [(2, f"v_exp_f32 v{TMP+i}, v{TMP+i} clamp") for i in range(16)]
        ops += [(1, f"v_max_f32 v{UR+i}, s{sHOFF}, v{UR+i}") for i in range(16)]
        ops += [(1, f"v_add_f32 v{TMP+i}, v{TMP+i}, v{UR+i}") for i in range(16)]
        ops += [(1, f"v_cvt_pk_bf16_f32 v{dst+p}, v{TMP+2*p}, v{TMP+2*p+1}") for p in range(8)]
        return ops
    def round_(orient, ops, extra, czero, vmc=None, vb=(6, 13, 20)):
        ops = list(ops)
        for s in range(3): trd(s)
        tot = sum(c for c, _ in ops); done = [0]; head = tot // (len(vb) + 1)
        def emit_until(x):
            while ops and done[0] + ops[0][0] <= x:
                c, t = ops.pop(0); a(t); done[0] += c
                if vmc is not None and t.startswith("buffer"): vmc.add("S")
        emit_until(head)
        if tot: a("s_setprio 1")
        for s in range(28):
            if s + 3 < 28: trd(s + 3)
            a(f"s_waitcnt lgkmcnt({2*min(3, 27-s)})")
            mf(s, orient, czero=czero)
            if s in extra: extra[s]()
            if (s in vb and tot) or ('v', s) in extra:
                if tot: a("s_setprio 0")
                emit_until(head + (tot - head) * (s + 1) / (vb[-1] + 1.0) + 0.01)
                if ('v', s) in extra: extra[('v', s)]()
                if tot: a("s_setprio 1")
        assert not ops
        if tot: a("s_setprio 0")
        stamp(a, sc[0], True); sc[0] += 1
    def dstream(every, n=7, vmc=None, tag="D"):
        ex = {}
        for i in range(n):
            def f():
                a(DLD)
                if vmc is not None: vmc.add(tag)
            ex[i * every] = f
            if i < n - 1: ex[i * every + 1] = lambda: a(DUP)
        return ex
    def p2_setup(slots):
        a(f"s_lshl_b32 s3, s{sKQ}, 11")
        for j in range(8): a(f"s_add_u32 s{sSL[j]}, s3, {slots[j]}")
        a(f"s_mov_b32 s{sHK}, {slots[0]}")
        for j in range(1, 8): a(f"s_cmp_eq_u32 s{sKQ}, {j}\ns_cselect_b32 s{sHK}, {slots[j]}, s{sHK}")
        a(f"""
        s_mul_i32 s{sWS}, s{sKQ}, {16*896}
        s_lshr_b32 s3, s{sKQ}, 1
        s_mul_i32 s{sKH}, s3, {28*896}
        s_and_b32 s3, s{sKQ}, 1
        s_mul_i32 s3, s3, {16*896}
        s_add_u32 s{sKH}, s{sKH}, s3
        v_lshlrev_b32 v{vPO}, 7, v{vL}
        v_and_b32 v{vT0}, 3, v{vL}
        v_lshlrev_b32 v{vT0}, 3, v{vT0}
        v_and_b32 v{vT1}, 16, v{vL}
        v_lshl_add_u32 v{vT0}, v{vT1}, 1, v{vT0}
        v_and_b32 v{vT1}, 8, v{vL}
        v_lshl_add_u32 v{vT0}, v{vT1}, 3, v{vT0}
        v_and_b32 v{vT1}, 12, v{vL}
        v_lshl_add_u32 v{vT0}, v{vT1}, 5, v{vT0}
        v_lshrrev_b32 v{vT2}, 5, v{vL}
        v_lshl_add_u32 v{vBL0}, v{vT2}, 9, v{vT0}
        v_add_u32 v{vL16c}, {NKS*1024}, v{vL16}
        """)
    def Whalf(j, c):
        S, base, imm = (SW2, sWS, j * 8 * 16 * 896) if j < 14 else (SWO, sKH, (j - 14) * 112 * 896)
        a(f"s_add_u32 m0, s{sSL[j%8]}, {1024*c}\ns_add_u32 s3, s{base}, {imm + c*8*896}\nbuffer_load_dwordx4 v{vOWQ}, {sr(S,4)}, s3 offen lds")
    def Hhalf(j, t):
        b = BB + (j % NB) * 8 + 4 * t
        a(f"s_add_u32 s3, s{sHB}, {j*8192}\nbuffer_load_dwordx4 {vr(b,4)}, v{vL16c if t else vL16}, {sr(SH,4)}, s3 offen sc1")
    def zflag_pub(cond_a, cond_b, idx, off):
        l = L("ZF")
        a(f"s_xor_b32 s3, s{sW}, 4\ns_or_b32 s3, s3, s{cond_a}\ns_cmp_lg_u32 s3, 0\ns_cbranch_scc1 {l}\nv_mov_b32 v{vT2}, 1\ns_lshl_b32 s3, s{idx}, 2")
        a(f"buffer_store_dword v{vT2}, v{vZ}, {sr(SD,4)}, s3 offen offset:{off} sc1\n{l}:")
    def midx(dst):
        a(f"s_lshl_b32 s{dst}, s{sROT}, 2\ns_and_b32 s3, s{sG}, 3\ns_add_u32 s{dst}, s{dst}, s3\ns_lshl_b32 s{dst}, s{dst}, 3\ns_add_u32 s{dst}, s{dst}, s{sW}")
    def pf_lin(S, n, base):
        midx(sT)
        a(f"s_mul_i32 s{sT}, s{sT}, {n*128}\ns_add_u32 s{sT}, s{sT}, {base}\nv_lshlrev_b32 v{vT1}, 7, v{vL}\ns_bfm_b64 exec, {n}, 0")
        a(f"buffer_load_dword v{vPF}, v{vT1}, {sr(S,4)}, s{sT} offen\ns_mov_b64 exec, -1")
    def pf_w2(i):
        if not L2W: return
        a(f"""
        s_lshl_b32 s{sT}, s{sROT}, 2
        s_and_b32 s3, s{sG}, 3
        s_add_u32 s{sT}, s{sT}, s3
        s_lshl_b32 s{sT}, s{sT}, 2
        s_add_u32 s{sT}, s{sT}, s{sTT}
        s_add_u32 s3, s2, {i}
        s_and_b32 s3, s3, 3
        s_cmp_eq_u32 s3, 3
        s_cselect_b64 s[{SDM}:{SDM+1}], s[{SWO}:{SWO+1}], s[{SW2}:{SW2+1}]
        s_cselect_b32 s{SDM+2}, s{SWO+2}, s{SW2+2}
        s_cselect_b32 s{sT2}, 49, 61
        s_cselect_b32 s{sSPIN}, 0, {128*7}
        s_cselect_b32 s3, 0, s3
        s_lshl_b32 s3, s3, 6
        s_add_u32 s{sT}, s{sT}, s3
        s_mul_i32 s{sT}, s{sT}, s{sT2}
        s_add_u32 s{sT}, s{sT}, s{sSPIN}
        s_lshl_b32 s{sT}, s{sT}, 7
        s_bfm_b64 exec, s{sT2}, 0
        buffer_load_dword v{vPF}, v{vPO}, {sr(SDM,4)}, s{sT} offen
        s_mov_b64 exec, -1
        """)
    def pf_vq():
        midx(sT)
        a(f"""
        s_mul_i32 s{sT}, s{sT}, 28
        v_add_u32 v{vT1}, s{sT}, v{vL}
        v_lshrrev_b32 v{vT2}, 3, v{vT1}
        v_mul_u32_u24 v{vT2}, 2688, v{vT2}
        v_and_b32 v{vT3}, 3, v{vT1}
        v_lshl_add_u32 v{vT2}, v{vT3}, 7, v{vT2}
        v_bfe_u32 v{vT3}, v{vT1}, 2, 1
        v_mul_u32_u24 v{vT3}, 1792, v{vT3}
        v_add_u32 v{vT2}, v{vT2}, v{vT3}
        s_lshr_b32 s3, s{sG}, 2
        s_mul_i32 s3, s3, 384
        v_add_u32 v{vT2}, s3, v{vT2}
        s_bfm_b64 exec, 28, 0
        global_load_dword v{vPF}, v{vT2}, s[{pWQKV}:{pWQKV+1}]
        s_mov_b64 exec, -1
        """)
    def gemm_first(orient):
        T = orient == "T"
        lk = Cnt(a, "lgkmcnt", 15)
        if T: bias(sCB, 0, lk)
        xr(0, lk); trd(0, lk); xr(1, lk); trd(1, lk); xr(2, lk); trd(2, lk); xr(3, lk)
        a(f"s_mul_i32 s3, s{sCH}, s{sDSTEP}\ns_lshl_b32 s3, s3, 2\ns_add_u32 s{sU[2]}, s{sU[2]}, s3\ns_lshl_b32 s3, s{sCH}, 14\ns_add_u32 s3, s3, {U[2]}\ns_add_u32 m0, s{sWL}, s3")
        if T: zflag_pub(sG, 0, sRG, 64)
        else: zflag_pub(sRG, 0, sG, 0)
        nops = []
        for q, (kb, o) in enumerate([(kb, o) for kb in range(4, 7) for o in range(2)]):
            t = TMP + 8 * (q % 2); r = XR + (kb*2+o)*4
            for d in range(4): nops += [f"v_lshlrev_b32 v{t+2*d}, 16, v{r+d}", f"v_and_b32 v{t+2*d+1}, s{sMASKHI}, v{r+d}"]
            for d in range(8): nops.append(f"v_fma_f32 v{t+d}, v{t+d}, v{ST+4+2*o}, v{ST+5+2*o}")
            for d in range(4): nops.append(f"v_cvt_pk_bf16_f32 v{r+d}, v{t+2*d}, v{t+2*d+1}")
            nops.append(("w", kb, o))
        pend = []
        def nrm(n, canw):
            for _ in range(n):
                if not nops: break
                x = nops.pop(0)
                if isinstance(x, tuple): pend.append(x)
                else: a(x)
            if canw:
                while pend:
                    _, kb, o = pend.pop(0); xw(kb, o, lk)
        nrm(12, False)
        S3 = 14
        for s in range(28):
            if s == 5:
                lk.wait(("x", 15)); bar(True)
            if s == 11:
                pass
            if s == S3:
                assert not nops and not pend
                lk.wait("w"); a("s_waitcnt vmcnt(4)"); bar(True)
                for z in (14, 15, 16): trd(z, lk)
                for x in range(16, 22): xr(x, lk)
            if s == 16:
                for x in range(22, 28): xr(x, lk)
            if s == 19:
                lk.wait(("x", 27)); bar(True)
                if T: setD(SW, vOW, 32 * 3584, U[3], f"s{sU[3]}", U[4], f"s{sU[4]}")
                else:
                    a(f"s_mul_i32 s3, s{sCH}, {4*32*2688}\ns_add_u32 s{sU[3]}, s{sU[3]}, s3\ns_lshl_b32 s3, s{sCH}, 14\ns_add_u32 s3, s3, {U[3]}\ns_add_u32 m0, s{sWL}, s3")
            if s + 3 < 28 and not (s < S3 and s + 3 >= 14): trd(s + 3, lk)
            if s < 4:
                for x in range(4 + 3*s, 7 + 3*s): xr(x, lk)
            lk.wait(("t", s)); lk.wait(("x", s))
            mf(s, orient, czero=not T)
            if s < S3: nrm(9, s >= 5)
            if s in (1, 3, 6): dmas(1, SW, vOW2 if T else vOW, sU[2], ST_)
            if s == 8: only_ch(0, lambda: dmas(1, SW, vOW2 if T else vOW, sU[2], ST_))
            if s >= 20:
                if T and s < 27: a(DLD + "\n" + DUP)
                if not T and s in (20, 22, 24): dmas(1, SW, vOW, sU[3], 32 * 2688)
                if not T and s == 26: only_ch(0, lambda: dmas(1, SW, vOW, sU[3], 32 * 2688))
        stamp(a, sc[0], True); sc[0] += 1

    a("s_waitcnt vmcnt(7) lgkmcnt(0)"); bar()
    a(f"s_cmp_eq_u32 s{sTYPE}, 0\ns_cbranch_scc1 L_ATT")
    gemm_first("T")
    flags_load()
    hoff(sCB, 0)
    setD(SW, vOW, 32 * 3584, U[0], f"s{sU[5]}", U[1], f"s{sU[6]}")
    SL_M = [U[2]] + [XB + 16384*i for i in range(4)] + [16384*i for i in range(3)]
    p2_setup(SL_M)
    a(f"s_cmp_eq_u32 s{sCH}, 0\ns_cbranch_scc0 L_MB")
    bias(sCHh, 0); setA(U[2], 0, xor=True)
    a("s_waitcnt vmcnt(8)"); bar()
    round_("T", gelu_ops(), dstream(3), False)
    bias(sCB, 1536); setA(U[3], U[4]); hoff(sCHh, 0)
    a("s_waitcnt vmcnt(9)"); flags_check(); bar()
    round_("T", gelu_ops(), {0: lambda: Whalf(0, 0), 3: lambda: Whalf(0, 1),
                             ('v', 13): lambda: (a("s_waitcnt vmcnt(2)"), signal(M1))}, False)
    a("s_branch L_MJ")
    a("L_MB:"); sc[0] -= 4
    a("s_waitcnt vmcnt(8)"); bar()
    for i in range(7): a(DLD + "\n" + DUP)
    call("EPI_GELU")
    bias(sCB, 1536); setA(U[3], U[4])
    a("s_waitcnt vmcnt(9)"); flags_check()
    latepf(1)
    a("s_xor_b32 s2, s2, 32"); latepf(1); a("s_xor_b32 s2, s2, 32")
    bar()
    round_("T", [], {0: lambda: Whalf(0, 0), 3: lambda: Whalf(0, 1),
                     ('v', 8): lambda: (a(f"s_waitcnt vmcnt({4 if PF else 2})"), signal(M1))}, False)
    a("L_MJ:")
    bias(sCB, 2560); setA(U[0], U[1]); hoff(sCB, 1536)
    bar()
    ex = {}
    for i in range(8): ex[3*i] = (lambda i=i: Whalf(1 + i // 2, i % 2))
    ex[('v', 6)] = lambda: only_ch(0, lambda: (a("s_waitcnt vmcnt(3)"), signal(MH)))
    round_("T", gelu_ops(), ex, False)
    hoff(sCB, 2560)
    bar()
    a("s_setprio 3")
    poll_issue(M1)
    for j in (5, 6): Whalf(j, 0); Whalf(j, 1)
    call("EPI_GELU")
    a("s_waitcnt vmcnt(6)"); signal(M2)
    a(f"s_mov_b32 s{sPUB}, 0\ns_branch L_P2")

    a("L_ATT:"); sc[0] = 5
    gemm_first("N")
    a(f"""
    v_and_b32 v{vT0}, 31, v{vL}
    v_cmp_gt_u32 s[{sDO}:{sDO+1}], 28, v{vT0}
    v_cmp_eq_u32 vcc, 28, v{vT0}
    v_mov_b32 v{vT1}, s{sONES}
    v_cndmask_b32 v{vMV}, 0, -1, s[{sDO}:{sDO+1}]
    v_cndmask_b32 v{vOV}, 0, v{vT1}, vcc
    v_cmp_gt_u32 vcc, 32, v{vL}
    v_cndmask_b32 v{vMLO}, 0, -1, vcc
    """)
    flags_load()
    a(f"s_mov_b32 s{sK1}, {f32(LOG2E)}\ns_mov_b32 s{sHOFF}, {f32(1e-6)}")
    setA(U[2], U[3])
    setD(SW, vOW, 32 * 2688, U[0], f"s{sU[5]}", U[4], f"s{sU[4]}")
    a("s_waitcnt vmcnt(0)"); bar()
    round_("N", phi_ops(PK), dstream(4), True)
    VV = TMP
    for p in range(8): a(f"v_cvt_pk_bf16_f32 v{VV+p}, v{UR+2*p}, v{UR+2*p+1}")
    for p in range(8): a(f"v_and_or_b32 v{VV+p}, v{VV+p}, v{vMV}, v{vOV}")
    a(f"{MF} {vr(ACC,16)}, {vr(PK,4)}, {vr(VV,4)}, 0\n{MF} {vr(ACC,16)}, {vr(PK+4,4)}, {vr(VV+4,4)}, {vr(ACC,16)}")
    a(f"""
    s_mul_i32 s{sT}, s{sCH}, {SCR[1] - SCR[0]}
    s_add_u32 s{sT}, s{sT}, {SCR[0]}
    s_lshl_b32 s3, s{sTT}, 10
    s_add_u32 s3, s3, s{sT}
    v_add_u32 v{vT1}, s3, v{vL16}
    s_lshl_b32 s3, s{sTT}, 12
    s_add_u32 s3, s3, s{sT}
    v_add_u32 v{vT3}, s3, v{vL16}
    """)
    for q in range(4): a(f"ds_write_b128 v{vT1}, {vr(ACC+4*q,4)} offset:{4096*q}")
    flags_check()
    a("s_waitcnt lgkmcnt(0)"); bar()
    for k in range(4): a(f"ds_read_b128 {vr(TMP+4*k,4)}, v{vT3} offset:{1024*k}")
    a(f"""
    s_lshl_b32 s3, s{sHEAD}, 12
    s_lshl_b32 s{sT}, s{sTT}, 10
    s_add_u32 s{sT}, s3, s{sT}
    s_add_u32 s{sT}, s{sT}, {WS_KV}
    v_lshlrev_b32 v{vT0}, 2, v{vL}
    """)
    setA(U[4], U[0])
    a("s_waitcnt lgkmcnt(0)")
    for j in range(4): a(f"v_add_f32 v{TMP+j}, v{TMP+j}, v{TMP+4+j}\nv_add_f32 v{TMP+8+j}, v{TMP+8+j}, v{TMP+12+j}")
    for j in range(4): a(f"v_add_f32 v{TMP+j}, v{TMP+j}, v{TMP+8+j}")
    for j in range(4): a(f"buffer_atomic_add_f32 v{TMP+j}, v{vT0}, {sr(SH,4)}, s{sT} offen offset:{256*j}")
    SL_A = [U[2], U[2] + 16384, U[2] + 32768, 32768, U[2] + 49152, U[2] + 65536, 0, 16384]
    p2_setup(SL_A)
    a(f"s_cmp_eq_u32 s{sP2}, 0\ns_cselect_b32 s{SW2+2}, 0, s{SW2+2}")
    a("s_waitcnt vmcnt(4)"); bar()
    ex = {}
    for i in range(8): ex[3*i] = (lambda i=i: Whalf(i // 2, i % 2))
    round_("T", [], ex, True)
    a("s_waitcnt vmcnt(8)"); bar()
    a("s_setprio 3")
    lx = L("KS")
    a(f"s_cmp_lg_u32 s{sW}, 0\ns_cbranch_scc1 {lx}"); flag_store(0); a(f"{lx}:")
    Whalf(4, 0); Whalf(4, 1)
    poll_issue(M1)
    for j in (5, 6): Whalf(j, 0); Whalf(j, 1)
    for c, t in phi_ops(PQ): a(t)
    for p in (6, 7): a(f"v_and_b32 v{PQ+p}, v{vMLO}, v{PQ+p}")
    a(f"s_mov_b32 s{sPUB}, 2\ns_waitcnt vmcnt(4)\ns_cmp_eq_u32 s{sP2}, 0\ns_cbranch_scc0 L_P2")
    poll_issue("K"); a("s_waitcnt vmcnt(0)")
    a(f"s_call_b64 s[{sRET}:{sRET+1}], OST_LOAD\ns_waitcnt vmcnt(0)\ns_call_b64 s[{sRET}:{sRET+1}], OST_COMP\ns_waitcnt vmcnt(0)")
    signal(MO)
    a("s_branch L_END")
    KVR = BB + 48; KP = BB + 64; OACC = 40; OP = 32
    KVL = MISC
    def ost_load():
        poll_check("K")
        a(f"s_lshl_b32 s3, s{sG}, 3\ns_add_u32 s3, s3, s{sW}\ns_lshl_b32 s3, s3, 10\ns_add_u32 s3, s3, {WS_KV}")
        a(f"buffer_load_dwordx4 {vr(KVR,4)}, v{vL16}, {sr(SH,4)}, s3 offen sc1")
    def ost_comp():
        a(f"s_lshl_b32 s3, s{sW}, 10\ns_add_u32 s3, s3, {KVL}\nv_add_u32 v{vT0}, s3, v{vL16}\nds_write_b128 v{vT0}, {vr(KVR,4)}")
        a(f"s_lshl_b32 s3, s{sCH}, 12\ns_add_u32 s3, s3, {KVL}\nv_lshlrev_b32 v{vT0}, 2, v{vL}\nv_add_u32 v{vT0}, s3, v{vT0}\ns_waitcnt lgkmcnt(0)\ns_barrier")
        for r in range(0, 16, 2): a(f"ds_read2st64_b32 {vr(KVR+r,2)}, v{vT0} offset0:{r} offset1:{r+1}")
        a("s_waitcnt lgkmcnt(0)")
        a(f"s_lshl_b32 s3, s{sHEAD}, 11\ns_add_u32 s3, s3, {112*1024}\ns_add_u32 s{sHOFF}, s{sTGB}, s3")
        for p in range(8): a(f"v_cvt_pk_bf16_f32 v{KP+p}, v{KVR+2*p}, v{KVR+2*p+1}")
        for p in (6, 7): a(f"v_and_b32 v{KP+p}, v{vMLO}, v{KP+p}")
        a(f"{MF} {vr(OACC,16)}, {vr(KP,4)}, {vr(PQ,4)}, 0\n{MF} {vr(OACC,16)}, {vr(KP+4,4)}, {vr(PQ+4,4)}, {vr(OACC,16)}")
        a(f"v_mov_b32 v{vT1}, v{OACC+12}\nv_mov_b32 v{vT2}, v{OACC+12}\nv_permlane32_swap_b32 v{vT1}, v{vT2}")
        a(f"v_add_f32 v{vT2}, {f32(1e-6)}, v{vT2}\nv_rcp_f32 v{vT2}, v{vT2}")
        for i in range(16): a(f"v_mul_f32 v{OACC+i}, v{OACC+i}, v{vT2}")
        for p in range(8): a(f"v_cvt_pk_bf16_f32 v{OP+p}, v{OACC+2*p}, v{OACC+2*p+1}")
        for p in (6, 7): a(f"v_and_b32 v{OP+p}, v{vMLO}, v{OP+p}")
        a(f"buffer_store_dwordx4 {vr(OP,4)}, v{vL16}, {sr(SH,4)}, s{sHOFF} offen sc1")
        a(f"buffer_store_dwordx4 {vr(OP+4,4)}, v{vL16}, {sr(SH,4)}, s{sHOFF} offen offset:1024 sc1")

    if P2ONLY:
        a(f"L_DBG:\ns_cmp_eq_u32 s{sP2}, 0\ns_cbranch_scc1 L_END\nv_mov_b32 v{vOWP}, v{vOWP1}\ns_waitcnt vmcnt(0)")
        p2_setup(SL_M)
        for j in range(5): Whalf(j, 0); Whalf(j, 1)
        a("s_waitcnt vmcnt(0)\ns_barrier\ns_setprio 3")
        stamp(a, 29)
        for j in (5, 6): Whalf(j, 0); Whalf(j, 1)
        a(f"s_mov_b32 s{sPUB}, 3")
    a("L_P2:")
    stamp(a, 30)
    vm = Cnt(a, "vmcnt", 63); lk = Cnt(a, "lgkmcnt", 15)
    vm.add("OLD")
    def TRj(j):
        vm.wait(("W", j))
        a(f"v_add_u32 v{vB0}, s{sSL[j%8]}, v{vBL0}\nv_xor_b32 v{vB1}, 64, v{vB0}")
        if len(lk.q) > 8: a("s_waitcnt lgkmcnt(8)"); lk.q = lk.q[-8:]
        for c in range(2):
            b = ABL[j % 8] + 4 * c
            a(f"ds_read_b64_tr_b16 {vr(b,2)}, v{vB0+c}\nds_read_b64_tr_b16 {vr(b+2,2)}, v{vB0+c} offset:1024")
        lk.add(("A", j), 4)
    def Wj(j):
        lk.wait(("A", j - 8)); Whalf(j, 0); Whalf(j, 1); vm.add(("W", j), 2)
    def Hj(j):
        Hhalf(j, 0); Hhalf(j, 1); vm.add(("H", j), 2)
    def Mj(j):
        vm.wait(("H", j)); lk.wait(("A", j))
        for t in range(2):
            for c in range(2):
                D = vr(ACC2 + 32*t + 16*c, 16)
                a(f"{MF} {D}, {vr(ABL[j%8]+4*c,4)}, {vr(BB+(j%NB)*8+4*t,4)}, {'0' if j == 0 else D}")
    def only(val, f):
        l = L("O"); a(f"s_cmp_eq_u32 s{sPUB}, {val}\ns_cbranch_scc0 {l}"); f(); a(f"{l}:")
    def P(m):
        if NOPOLL: return
        poll_issue(m); vm.add("P")
    def chk(m): vm.wait("P"); poll_check(m)
    def sub(l): a(f"s_call_b64 s[{sRET}:{sRET+1}], {l}")
    RES = 248
    def resld():
        srd(a, SDM, pB2, 896)
        a(f"""
        v_and_b32 v{vT0}, 31, v{vL}
        v_lshrrev_b32 v{vT2}, 5, v{vL}
        v_mul_u32_u24 v{vXO}, 896, v{vT0}
        v_lshl_add_u32 v{vXO}, v{vT2}, 4, v{vXO}
        s_lshr_b32 s{sT2}, s{sKQ}, 2
        s_lshl_b32 s3, s{sRT}, 1
        s_add_u32 s3, s3, s{sT2}
        s_mul_i32 s3, s3, {32*896}
        s_lshl_b32 s{sT}, s{sCT}, 7
        s_and_b32 s{sT2}, s{sKQ}, 3
        s_lshl_b32 s{sT2}, s{sT2}, 5
        s_add_u32 s{sT}, s{sT}, s{sT2}
        s_add_u32 s3, s3, s{sT}
        v_add_u32 v{vXO}, s3, v{vXO}
        v_lshlrev_b32 v{vT1}, 4, v{vT2}
        buffer_load_dwordx4 {vr(RES,4)}, v{vXO}, {sr(SX,4)}, 0 offen
        buffer_load_dwordx4 {vr(RES+4 if not PROF else 20,4)}, v{vT1}, {sr(SDM,4)}, s{sT} offen
        """)
        vm.add("R", 2)
    cnt = [0]; pos = {("W", j): -100 for j in range(5)}; pos[("W", 5)] = -4; pos[("W", 6)] = -2
    doneT, doneM = [0], [0]
    allowM = [False]
    def pump(final=False):
        prog = True
        while prog:
            prog = False
            j = doneT[0]
            if j < 18 and ("W", j) in pos and (final or cnt[0] - pos[("W", j)] >= LA) and (j < 8 or doneM[0] > j - 8):
                if j in (5, 6): vm.wait("OLD")
                TRj(j); doneT[0] += 1; prog = True
            j = doneM[0]
            if allowM[0] and j < 18 and ("H", j) in pos and doneT[0] > j and (final or cnt[0] - pos[("H", j)] >= LA):
                Mj(j); doneM[0] += 1; prog = True
    def force_T(j):
        while doneT[0] <= j:
            k = doneT[0]
            if k >= 8: force_M(k - 8)
            if k in (5, 6): vm.wait("OLD")
            TRj(k); doneT[0] += 1
    def force_M(j):
        while doneM[0] <= j:
            force_T(doneM[0]); Mj(doneM[0]); doneM[0] += 1
    def marks(tag): return len(vm.q) - 1 - max(i for i, t in enumerate(vm.q) if t == tag)
    SEQS = {
     0: ["W7", "W8", "W9", "sigF", "W10", "W11", "pK", "W12", "cM1", "H0", "H1", "oL", "pMH", "H2", "H3", "oC", "W13", "W14", "cMH", "pM2", "H4", "H5", "W15",
           "sigO", "W16", "W17", "cM2", "pMF", "H6", "H7", "H8", "H9", "cMF", "pMO", "H10", "H11", "H12", "H13", "cMO", "R", "H14", "H15", "H16", "H17"],
     1: ["W7", "W8", "W9", "pK", "sigF", "W10", "W11", "oL", "W12", "cM1", "H0", "oC", "H1", "pMH", "H2", "H3", "sigO", "W13", "W14", "cMH", "pM2", "H4", "H5", "W15",
           "W16", "W17", "cM2", "pMF", "H6", "H7", "H8", "H9", "cMF", "pMO", "H10", "H11", "H12", "H13", "cMO", "R", "H14", "H15", "H16", "H17"],
     2: ["W7", "W8", "pK", "W9", "sigF", "oL", "W10", "oC", "W11", "W12", "sigO", "cM1", "H0", "H1", "pMH", "H2", "H3", "W13", "W14", "cMH", "pM2", "H4", "H5", "W15",
           "W16", "W17", "cM2", "pMF", "H6", "H7", "H8", "H9", "cMF", "pMO", "H10", "H11", "H12", "H13", "cMO", "R", "H14", "H15", "H16", "H17"],
    }
    seq = SEQS[SEQ]
    MM = {"M1": M1, "MH": MH, "M2": M2, "MF": MF_, "MO": MO}
    mk = {}
    for it in seq:
        if it[0] == "W":
            j = int(it[1:])
            if j >= 8: force_T(j - 8); Wj(j)
            else: Whalf(j, 0); Whalf(j, 1); vm.add(("W", j), 2)
            cnt[0] += 2; pos[("W", j)] = cnt[0]
        elif it[0] == "H":
            j = int(it[1:])
            if j >= NB: force_M(j - NB)
            Hj(j); cnt[0] += 2; pos[("H", j)] = cnt[0]
        elif it == "R": resld(); cnt[0] += 2
        elif it == "sigF":
            vm.wait("OLD"); only(0, lambda: signal(MF_)); stamp(a, 31); a("s_setprio 2")
        elif it == "pK": only(2, lambda: poll_issue("K")); mk["K"] = cnt[0] + mk.get("np", 0)
        elif it == "oL":
            n = cnt[0] + mk.get("np", 0) - mk["K"]
            only(2, lambda: (a(f"s_setprio 3\ns_waitcnt vmcnt({n})"), sub("OST_LOAD"), a("s_setprio 2"))); mk["K"] = cnt[0] + mk.get("np", 0)
        elif it == "oC":
            n = cnt[0] + mk.get("np", 0) - mk["K"]
            only(2, lambda: (a(f"s_setprio 3\ns_waitcnt vmcnt({n})"), sub("OST_COMP"), a("s_setprio 2"))); mk["K"] = cnt[0] + mk.get("np", 0)
            allowM[0] = True
        elif it == "sigO":
            n = cnt[0] + mk.get("np", 0) - mk["K"]
            stamp(a, 32)
            only(2, lambda: (a(f"s_setprio 3\ns_waitcnt vmcnt({n})"), signal(MO), a("s_setprio 2")))
        elif it[0] == "p":
            P(MM[it[1:]]); mk["np"] = mk.get("np", 0) + (0 if NOPOLL else 1)
        elif it[0] == "c":
            chk(MM[it[1:]])
            if it == "cM2": a("s_setprio 1"); stamp(a, 33)
            if it == "cMF": stamp(a, 34)
            if it == "cMO": a("s_setprio 0"); stamp(a, 35)
        pump()
    pump(final=True)
    assert doneM[0] == 18
    stamp(a, 50)
    for d in range(8):
        a(f"v_add_u32 v{vT0 + d % 2}, s{sSL[d]}, v{vL16}")
        for hh in range(2): a(f"ds_write_b128 v{vT0 + d % 2}, {vr(ACC2 + 8*d + 4*hh, 4)} offset:{hh*1024}")
    a(f"v_add_u32 v{vT2}, s{sHK}, v{vL16}")
    srd(a, SDM, pOUT, 2048 * 896)
    R = BB + 16; T = BB
    vm.wait("R")
    for j, src in enumerate((RES, RES+4 if not PROF else 20)):
        for d in range(4):
            a(f"v_lshlrev_b32 v{T+8*j+2*d}, 16, v{src+d}\nv_and_b32 v{T+8*j+2*d+1}, s{sMASKHI}, v{src+d}")
    for i in range(8): a(f"v_add_f32 v{T+i}, v{T+i}, v{T+8+i}")
    a("s_waitcnt lgkmcnt(0)\ns_barrier")
    stamp(a, 49)
    for k in range(8):
        for hh in range(2):
            if k == 6 and hh == 0: a("s_waitcnt lgkmcnt(4)")
            a(f"ds_read_b128 {vr(R + 8*k + 4*hh, 4)}, v{vT2} offset:{k*2048 + hh*1024}")
    for k in (0, 2):
        for i in range(8): a(f"v_add_f32 v{R+8*k+i}, v{R+8*k+i}, v{R+8*k+8+i}")
    for i in range(8): a(f"v_add_f32 v{R+i}, v{R+i}, v{R+16+i}")
    a("s_waitcnt lgkmcnt(0)")
    for k in (4, 6):
        for i in range(8): a(f"v_add_f32 v{R+8*k+i}, v{R+8*k+i}, v{R+8*k+8+i}")
    for i in range(8): a(f"v_add_f32 v{R+32+i}, v{R+32+i}, v{R+48+i}")
    for i in range(8): a(f"v_add_f32 v{R+i}, v{R+i}, v{R+32+i}")
    for j in range(4): a(f"v_permlane32_swap_b32 v{R+j}, v{R+4+j}")
    for i in range(8): a(f"v_add_f32 v{R+i}, v{R+i}, v{T+i}")
    for p in range(4): a(f"v_cvt_pk_bf16_f32 v{T+p}, v{R+2*p}, v{R+2*p+1}")
    a(f"buffer_store_dwordx4 {vr(T,4)}, v{vXO}, {sr(SDM,4)}, 0 offen {OUTF}")
    a("L_END:")
    stamp(a, 51)
    if DIAG >= 0:
        a(f"""
        s_cmp_lg_u32 s{sTYPE}, {DTYPE}
        s_cbranch_scc1 L_EXIT
        s_cmp_eq_u32 s{sP2}, 0
        s_cbranch_scc1 L_EXIT
        s_memrealtime s[38:39]
        v_readlane_b32 s4, v254, 0
        v_readlane_b32 s5, v254, 1
        s_waitcnt lgkmcnt(0)
        s_sub_u32 s5, s5, s4
        s_min_u32 s5, s5, 5000
L_DL:
        s_memrealtime s[6:7]
        s_waitcnt lgkmcnt(0)
        s_sub_u32 s6, s6, s38
        s_cmp_lt_u32 s6, s5
        s_cbranch_scc1 L_DL
        """)
    elif PROF:
        a("s_waitcnt vmcnt(0)"); stamp(a, 52); stamp_rt(a, 63)
        a(f"s_lshl_b32 s3, s2, 3\ns_add_u32 s3, s3, s{sW}\ns_lshl_b32 s3, s3, 8\ns_add_u32 s3, s3, {WS_PROF}\nv_lshlrev_b32 v255, 2, v{vL}\nbuffer_store_dword v254, v255, {sr(SH,4)}, s3 offen")
    a("L_EXIT:\ns_endpgm")

    RETI = f"s_setpc_b64 s[{sRET}:{sRET+1}]"
    a.hist = []
    a("OST_LOAD:"); ost_load(); a(RETI)
    a.hist = []
    a("OST_COMP:"); ost_comp(); a(RETI)
    a.hist = []
    a("EPI_GELU:")
    for c, t in gelu_ops(): a(t)
    a(RETI)
    a.raw(".fill 1024, 4, 0xbf800000")
    return name

def main(out):
    a = Asm()
    a.raw('.amdgcn_target "amdgcn-amd-amdhsa--gfx950"\n.text')
    name = gen(a)
    txt = HDR + f"; @launch grid=(256,1,1) block=(512,1,1) lds={LDS}\n" + a.text()
    txt += f""".section .rodata,"a"
.p2align 6
.amdhsa_kernel {name}
  .amdhsa_next_free_vgpr 256
  .amdhsa_next_free_sgpr 102
  .amdhsa_accum_offset 256
  .amdhsa_group_segment_fixed_size 0
  .amdhsa_kernarg_size 88
  .amdhsa_user_sgpr_count 2
  .amdhsa_user_sgpr_kernarg_segment_ptr 1
  .amdhsa_system_sgpr_workgroup_id_x 1
.end_amdhsa_kernel
"""
    if NOPRIO:
        i0 = txt.index("L_P2:")
        txt = txt[:i0] + "\n".join("    s_nop 0" if "s_setprio" in l else l for l in txt[i0:].split("\n"))
    if PLAINST:
        txt = "\n".join(l.replace(" sc1", "") if "buffer_store_dwordx4" in l else l for l in txt.split("\n"))
    open(out, "w").write(txt)
    print("nops inserted:", a.nops, "lines:", txt.count("\n"))

if __name__ == "__main__":
    main(sys.argv[1] if len(sys.argv) > 1 and not sys.argv[1].startswith("--") else "cdna_kernels/%s.s" % NAME)
```
